```python
import torch

def _softmax(x, axis=-1):
    return torch.softmax(x, dim=axis)
def _gelu(x):
    return torch.nn.functional.gelu(x, approximate="tanh")
def _silu(x):
    return torch.nn.functional.silu(x)
def _sigmoid(x):
    return torch.sigmoid(x)
def _layernorm(x, axis=-1, eps=1e-5):
    m = x.mean(dim=axis, keepdim=True)
    v = x.var(dim=axis, keepdim=True, unbiased=False)
    return (x - m) / torch.sqrt(v + eps)
def _scatter_add(tgt, idx, src, axis=0):
    return tgt.clone().index_add_(axis, idx, src)
def _segment_sum(src, seg, n):
    out = torch.zeros((n,) + src.shape[1:], dtype=src.dtype)
    return out.index_add_(0, seg, src)
def _pad(x, pw):
    flat = tuple(v for pair in reversed(pw) for v in pair)
    return torch.nn.functional.pad(x, flat)

kernel_name = 'recurrent_scan__ssm_conv_s4__dense_activation_gelu__prompt'

def setup_inputs():

    _w = (lambda a: (lambda t: t.to(torch.bfloat16) if t.is_floating_point() else t)(torch.as_tensor(a)))
    def _A_setup():
        B, L, D, N = 1, 2048, 640, 128
        A_re = -(lambda _x: torch.exp(torch.as_tensor(_x)))((lambda *s: torch.randn(*s, dtype=torch.bfloat16) * 6.4)(D, N))
        A_im = torch.pi * (lambda *s: torch.randn(*s, dtype=torch.bfloat16) * 0.2)(D, N)
        B_re = (lambda *s: torch.randn(*s, dtype=torch.bfloat16) * 0.2)(D, N)
        B_im = (lambda *s: torch.randn(*s, dtype=torch.bfloat16) * 0.2)(D, N)
        C_re = (lambda *s: torch.randn(*s, dtype=torch.bfloat16) * 0.2)(D, N)
        C_im = (lambda *s: torch.randn(*s, dtype=torch.bfloat16) * 0.2)(D, N)
        log_dt = (lambda *s: torch.randn(*s, dtype=torch.bfloat16) * 0.2)(D) * 0.5 - 4.0
        Dskip = (lambda *s: torch.randn(*s, dtype=torch.bfloat16) * 0.2)(D)
        return {
            "u": _w((lambda *s: torch.randn(*s, dtype=torch.bfloat16) * 0.05)(B, L, D)),
            "A_re": _w(A_re),
            "A_im": _w(A_im),
            "B_re": _w(B_re),
            "B_im": _w(B_im),
            "C_re": _w(C_re),
            "C_im": _w(C_im),
            "log_dt": _w(log_dt),
            "Dskip": _w(Dskip),
        }
    _A_in = _A_setup()

    def _B_setup():
        B, S, D, F = 1, 2048, 640, 1728
        return {
            "x": _w((lambda *s: torch.randn(*s, dtype=torch.bfloat16) * 0.05)(B, S, D)),
            "w1": _w((lambda *s: torch.randn(*s, dtype=torch.bfloat16) * 0.8)(D, F) * (D ** -0.5)),
            "b1": _w((lambda *s: torch.randn(*s, dtype=torch.bfloat16) * 0.1)(F) * 0.01),
            "w2": _w((lambda *s: torch.randn(*s, dtype=torch.bfloat16) * 0.1)(F, D) * (F ** -0.5)),
            "b2": _w((lambda *s: torch.randn(*s, dtype=torch.bfloat16) * 0.1)(D) * 0.01),
        }
    _B_in = _B_setup()

    return {
        "A_u": _A_in["u"],
        "A_A_re": _A_in["A_re"],
        "A_A_im": _A_in["A_im"],
        "A_B_re": _A_in["B_re"],
        "A_B_im": _A_in["B_im"],
        "A_C_re": _A_in["C_re"],
        "A_C_im": _A_in["C_im"],
        "A_log_dt": _A_in["log_dt"],
        "A_Dskip": _A_in["Dskip"],
        "B_x": _B_in["x"],
        "B_w1": _B_in["w1"],
        "B_b1": _B_in["b1"],
        "B_w2": _B_in["w2"],
        "B_b2": _B_in["b2"],
    }

def reference(A_u, A_A_re, A_A_im, A_B_re, A_B_im, A_C_re, A_C_im, A_log_dt, A_Dskip, B_x, B_w1, B_b1, B_w2, B_b2):
    def _A_ref(u, A_re, A_im, B_re, B_im, C_re, C_im, log_dt, Dskip):
        Bsz, L, D = u.shape
        dt = torch.exp(log_dt)[:, None]
        A = A_re + 1j * A_im
        Bc = B_re + 1j * B_im
        Cc = C_re + 1j * C_im
        logdA = dt * A
        dB = dt * Bc
        l = (lambda x, dt: x.to(dt))(torch.arange(L), A_re.dtype)
        P = torch.exp(logdA[:, :, None] * l[None, None, :])
        K = torch.einsum("dn,dnl,dn->dl", Cc, P, dB).real
        L2 = 2 * L
        Kp = _pad(K, ((0, 0), (0, L)))
        up = (lambda x, *d: x.permute(*d))(u, 0, 2, 1)
        up = _pad(up, ((0, 0), (0, 0), (0, L)))
        Kf = (lambda x, axes=(-2,-1): torch.fft.rfft2(x.float(), dim=axes))(Kp[:, None, :], axes=(-2, -1))
        Uf = (lambda x, axes=(-2,-1): torch.fft.rfft2(x.float(), dim=axes))(up[:, :, None, :], axes=(-2, -1))
        Yf = Uf * Kf[None, :, :, :]
        y = (lambda x, s, axes=(-2,-1): torch.fft.irfft2(x, s=s, dim=axes).to(torch.bfloat16))(Yf, (1, L2), axes=(-2, -1))[:, :, 0, :L]
        y = (lambda x, *d: x.permute(*d))(y, 0, 2, 1) + u * Dskip[None, None, :]
        return y

    def _B_ref(x, w1, b1, w2, b2):
        h = torch.einsum("bsd,df->bsf", x, w1) + b1
        h = _gelu(h)
        return torch.einsum("bsf,fd->bsd", h, w2) + b2

    x = A_u
    xn = _layernorm(x, axis=-1)
    s = _A_ref(xn, A_A_re, A_A_im, A_B_re, A_B_im, A_C_re, A_C_im, A_log_dt, A_Dskip)
    g = _silu(_B_ref(xn, B_w1, B_b1, B_w2, B_b2))
    return x + s * g
```

```python
import re

class Item:
    __slots__ = ("kind", "text", "tag", "opt")
    def __init__(self, kind, text=None, tag=None, opt=False):
        self.kind, self.text, self.tag, self.opt = kind, text, tag, opt

class S(list):
    def I(self, text):
        for ln in text.strip().split("\n"):
            ln = ln.strip()
            if not ln or ln.startswith(";"): continue
            op = ln.split()[0]
            assert not op.startswith(("buffer_", "global_", "ds_")), ln
            self.append(Item("label" if ln.endswith(":") else "ins", ln))
        return self
    def VM(self, text, tag=None, opt=False):
        self.append(Item("vm", text.strip(), tag, opt)); return self
    def DS(self, text, tag=None, opt=False):
        self.append(Item("ds", text.strip(), tag, opt)); return self
    def WV(self, tag): self.append(Item("wv", tag=tag)); return self
    def WL(self, tag): self.append(Item("wl", tag=tag)); return self
    def WV0(self): self.append(Item("wv0")); return self
    def WL0(self): self.append(Item("wl0")); return self
    def RESETVM(self): self.append(Item("rvm")); return self
    def C(self, text): self.append(Item("cmt", text)); return self
    def G(self, items):
        self.append(Item("group", tag=list(items))); return self

def flat(s):
    out = []
    for it in s:
        if it.kind == "group": out += flat(it.tag)
        else: out.append(it)
    return out

def sprinkle(main, extra, start=0, end=None):
    main = list(main); extra = list(extra)
    if end is None: end = len(main)
    n = len(extra)
    out = S()
    pos = [start + (i * (end - start)) // max(n, 1) for i in range(n)]
    k = 0
    for i, it in enumerate(main):
        while k < n and pos[k] <= i:
            out.append(extra[k]); k += 1
        out.append(it)
    while k < n:
        out.append(extra[k]); k += 1
    return out

def resolve(stream):
    vm, ds = [], []
    out = []
    def emit_wait(kind, n):
        txt = f"{kind}({n})"
        if out and out[-1].startswith("s_waitcnt ") and kind not in out[-1]:
            out[-1] += " " + txt
        else:
            out.append("s_waitcnt " + txt)
    seen_vm, seen_ds = set(), set()
    for it in flat(stream):
        k = it.kind
        if k in ("ins", "label"): out.append(it.text)
        elif k == "cmt": out.append("; " + it.text)
        elif k == "vm":
            out.append(it.text); vm.append((it.tag, it.opt)); seen_vm.add(it.tag)
        elif k == "ds":
            out.append(it.text); ds.append((it.tag, it.opt)); seen_ds.add(it.tag)
        elif k in ("wv", "wl"):
            lst, mx, nm, seen = (vm, 63, "vmcnt", seen_vm) if k == "wv" else (ds, 15, "lgkmcnt", seen_ds)
            assert it.tag in seen, f"wait for unknown tag {it.tag}"
            idx = [i for i, (t, _) in enumerate(lst) if t == it.tag]
            if not idx: continue
            last = idx[-1]
            n = sum(1 for (t, o) in lst[last + 1:] if not o)
            emit_wait(nm, min(n, mx))
            del lst[:last + 1]
        elif k == "wv0": emit_wait("vmcnt", 0); vm.clear()
        elif k == "wl0": emit_wait("lgkmcnt", 0); ds.clear()
        elif k == "rvm": vm.clear()
        else: raise ValueError(k)
    return out

REG = re.compile(r"\b([vas])(?:(\d+)|\[(\d+):(\d+)\])")
def regs(opnd):
    out = set()
    for m in REG.finditer(opnd):
        t = m.group(1)
        if m.group(2) is not None: out.add((t, int(m.group(2))))
        else: out |= {(t, i) for i in range(int(m.group(3)), int(m.group(4)) + 1)}
    if re.search(r"\bvcc\b", opnd): out.add(("vcc", 0))
    if re.search(r"\bexec\b", opnd): out.add(("exec", 0))
    if re.search(r"\bm0\b", opnd): out.add(("m0", 0))
    return out
TRANS = ("v_exp_f32", "v_log_f32", "v_rcp_f32", "v_rsq_f32", "v_sqrt_f32", "v_sin_f32", "v_cos_f32")
def split_ops(ln):
    parts = ln.split(None, 1)
    op = parts[0]
    rest = parts[1] if len(parts) > 1 else ""
    ops = [o.strip() for o in re.split(r",(?![^\[]*\])", rest)]
    return op, ops
def classify(ln):
    op, ops = split_ops(ln)
    base = re.sub(r"_(e32|e64|dpp|sdwa)$", "", op)
    d = dict(op=base, w=set(), r=set(), cls="other", C=set(), AB=set(), dpp=("dpp" in op or "row_" in ln), sdata=set())
    if base.startswith("v_mfma"):
        d["cls"] = "mfma"; d["w"] = regs(ops[0]); d["AB"] = regs(ops[1]) | regs(ops[2]); d["C"] = regs(ops[3])
        d["r"] = d["AB"] | d["C"]; d["passes"] = 8 if "32x32" in base else 4
    elif base.startswith("v_"):
        d["cls"] = "valu"
        d["w"] = regs(ops[0]); d["r"] = set().union(*[regs(o) for o in ops[1:]]) if len(ops) > 1 else set()
        if base.startswith(("v_add_co", "v_sub_co", "v_addc_co")): d["w"] |= regs(ops[1])
        if base.startswith(("v_fmac", "v_permlane", "v_writelane", "v_dot2c")): d["r"] |= regs(ops[0])
        if base.startswith("v_permlane"): d["w"] |= regs(ops[1])
        if base.startswith("v_cmpx"): d["w"].add(("exec", 0))
    elif base.startswith(("buffer_", "global_")):
        d["cls"] = "vmem"
        islds = bool(re.search(r"\blds\b", ln)) or "_lds_" in base
        if "load" in base and not islds:
            d["w"] = regs(ops[0]); d["r"] = set().union(*[regs(o) for o in ops[1:]])
        else:
            d["r"] = set().union(*[regs(o) for o in ops])
            if "store" in base and ("x3" in base or "x4" in base):
                d["sdata"] = regs(ops[0] if base.startswith("buffer") else ops[1])
        if islds: d["r"].add(("m0", 0))
    elif base.startswith("ds_"):
        d["cls"] = "ds"
        if "read" in base or "permute" in base or "swizzle" in base:
            d["w"] = regs(ops[0]); d["r"] = set().union(*[regs(o) for o in ops[1:]])
        else:
            d["r"] = set().union(*[regs(o) for o in ops])
    elif base.startswith("s_"):
        d["cls"] = "salu"
        if base in ("s_nop", "s_waitcnt", "s_barrier", "s_branch", "s_sleep", "s_endpgm", "s_setprio") or base.startswith(("s_cbranch", "s_cmp")):
            d["r"] = set().union(*[regs(o) for o in ops]) if ops else set()
        else:
            d["w"] = regs(ops[0]); d["r"] = set().union(*[regs(o) for o in ops[1:]]) if len(ops) > 1 else set()
            if "saveexec" in base: d["w"].add(("exec", 0))
    return d

def need(p, c):
    n = 0
    vw = {r for r in p["w"] if r[0] in "va" and r[0] != "vcc"}
    vw = {r for r in p["w"] if r[0] in ("v", "a")}
    sw = {r for r in p["w"] if r[0] in ("s", "vcc")}
    if p["cls"] == "valu":
        if c["cls"] == "mfma" and vw & c["r"]: n = max(n, 2)
        if c["cls"] == "valu":
            if p["op"] in TRANS and c["op"] not in TRANS and vw & c["r"]: n = max(n, 1)
            if c["dpp"] and vw & c["r"]: n = max(n, 2)
            if c["op"].startswith("v_permlane") and vw & c["r"]: n = max(n, 2)
            if c["op"].startswith(("v_readlane", "v_readfirstlane")) and vw & c["r"]: n = max(n, 1)
            if sw & c["r"]: n = max(n, 2)
            if ("exec", 0) in p["w"] and (c["dpp"]): n = max(n, 5)
        if p["op"] in TRANS and c["cls"] in ("vmem", "ds") and vw & c["r"]: n = max(n, 1)
        if c["cls"] == "vmem" and sw & c["r"]: n = max(n, 5)
        if c["cls"] == "salu" and sw & c["r"]: n = max(n, 1)
    if p["cls"] == "salu" and ("m0", 0) in p["w"] and c["cls"] == "vmem" and ("m0", 0) in c["r"]: n = max(n, 1)
    if p["cls"] == "mfma":
        big = 12 if p["passes"] == 8 else 8
        if c["cls"] == "mfma":
            if p["w"] & c["AB"]: n = max(n, big)
            if p["w"] & c["C"] and not (p["w"] == c["C"] and p["passes"] == c["passes"]): n = max(n, big - 2)
            if p["w"] & c["w"] and not (p["w"] == c["C"]): n = max(n, big)
        elif c["cls"] in ("valu", "vmem", "ds"):
            if p["w"] & (c["r"] | c["w"]): n = max(n, big)
            if c["cls"] == "valu" and p["C"] & c["w"]: n = max(n, 7 if p["passes"] == 8 else 3)
    if p["cls"] == "vmem" and p["sdata"] and c["cls"] in ("valu", "mfma") and p["sdata"] & c["w"]: n = max(n, 2)
    return n

def fix_hazards(lines, verbose=False):
    out = []; hist = []
    nins = 0
    for ln in lines:
        if ln.startswith(";") or ln.endswith(":") or ln.startswith("."):
            out.append(ln); continue
        c = classify(ln)
        dist = 0; req = 0
        for p, st in reversed(hist):
            r = need(p, c) - dist
            if r > req: req = r
            dist += st
            if dist >= 20: break
        if req > 0:
            out.append(f"s_nop {req-1}"); hist.append((classify("s_nop 0"), req)); nins += 1
            if verbose: print("hazard pad", req, "before", ln)
        st = 1
        if c["op"] == "s_nop": st = int(ln.split()[1]) + 1
        out.append(ln); hist.append((c, st))
        if len(hist) > 40: hist = hist[-30:]
    return out, nins
```

```python
import sys, struct, math
sys.path.insert(0, "dev")
from gl import *

NAME = "recurrent_scan__ssm_conv_s4__dense_activation_gelu__prompt"
def f2u(x): return struct.unpack("<I", struct.pack("<f", x))[0]
def hx(x): return f"0x{x & 0xffffffff:08x}"

WS_EPOCH = 0
WS_F1 = 0x1000
WS_F1ALL = 0x9000
WS_F2 = 0xA000
WS_F3 = 0x28000
WS_STAMP = 0x40000
WS_XF = 0x100000
WS_G = 0x380000
WS_W2F = 0x600000
WS_ST = 0x840000
WS_HF = 0xAC0000
WS_SIZE = 0x1200000
L_TBL = 73728; TROW = 528; TCH = 63 * TROW
L_LNI = 140288; LNS = 1344
L_W2S = 151552
L_RST = 140288; RSTS = 4112
KS = 4160; UAO = 4 * KS; UBO = UAO + 4640; CHS = UBO + 4640
L_PART = 52224
L_PB = 86016; PBW = 16 * 336; PBS = 4 * PBW
L_ST = L_PB + 2 * PBS
LDS_BYTES = 163840
sX, sARE, sAIM, sBRE, sBIM, sCRE, sCIM, sLDT = [f"s[{i}:{i+1}]" for i in range(4, 20, 2)]
sDSK = "s[20:21]"; sB2 = "s[30:31]"
RWS = "s[40:43]"; RW1 = "s[44:47]"; RW2 = "s[48:51]"; RB1 = "s[52:55]"; RX = "s[56:59]"; ROUT = "s[60:63]"
sW, sXCD, sSLOT, sRB, sCT, sPAIR = "s64", "s65", "s66", "s67", "s68", "s69"
sTOK = "s[70:71]"
sW1B, sXNB, sM0B, sRB64, sCT2 = "s72", "s73", "s74", "s75", "s76"
sT0, sT1, sT2, sT3, sSPIN = "s77", "s78", "s79", "s80", "s81"
STAMP0 = 82
LOG2E = 1.4426950408889634

class Cfg:
    stamps = False
    g2map = "4x8"
    spin = 1 << 20

def v(i, n=1): return f"v{i}" if n == 1 else f"v[{i}:{i+n-1}]"
def a(i, n=1): return f"a{i}" if n == 1 else f"a[{i}:{i+n-1}]"

class Gen:
    def __init__(self, cfg):
        self.c = cfg; self.nl = 0
    def lab(self, b):
        self.nl += 1; return f"L_{b}_{self.nl}"
    def stamp(self, s, i):
        if self.c.stamps:
            s.I(f"s_memtime s[38:39]\ns_waitcnt lgkmcnt(0)\ns_mov_b32 s{STAMP0+i}, s38")

    def flag_addr(self, s, vaddr, base_sgpr_expr, n):
        s.I(f"v_min_u32 {v(vaddr)}, {n-1}, v1\nv_lshlrev_b32 {v(vaddr)}, 7, {v(vaddr)}\nv_add_u32 {v(vaddr)}, {base_sgpr_expr}, {v(vaddr)}")
    def flag_issue(self, s, vd, vaddr, tag):
        s.VM(f"buffer_load_dwordx2 {v(vd,2)}, {v(vaddr)}, {RWS}, 0 offen sc1", tag)
    def flag_check(self, s, vd, vaddr, tag, sleep=2):
        ok, lp = self.lab("ok"), self.lab("poll")
        g = S()
        g.WV(tag)
        g.I(f"v_cmp_ne_u64 vcc, {sTOK}, {v(vd,2)}\ns_cbranch_vccz {ok}\ns_mov_b32 {sSPIN}, 0\n{lp}:\ns_sleep {sleep}")
        g.VM(f"buffer_load_dwordx2 {v(vd,2)}, {v(vaddr)}, {RWS}, 0 offen sc1", opt=True)
        g.I(f"s_add_u32 {sSPIN}, {sSPIN}, 1\ns_waitcnt vmcnt(0)\nv_cmp_ne_u64 vcc, {sTOK}, {v(vd,2)}\ns_cbranch_vccz {ok}\n"
            f"s_cmp_lt_u32 {sSPIN}, {self.c.spin}\ns_cbranch_scc1 {lp}\n{ok}:")
        s.G(g)
    def flag_set(self, s, vt, soff, only_wave0):
        sk = self.lab("fs")
        g = S()
        if only_wave0: g.I(f"s_cmp_lg_u32 {sW}, 0\ns_cbranch_scc1 {sk}")
        g.I(f"v_mov_b32 {v(vt)}, s70\nv_mov_b32 {v(vt+1)}, s71\nv_mov_b32 {v(vt+2)}, 0\ns_mov_b64 exec, 1")
        g.VM(f"buffer_store_dwordx2 {v(vt,2)}, {v(vt+2)}, {RWS}, {soff} offen sc1", opt=True)
        g.I("s_mov_b64 exec, -1")
        if only_wave0: g.I(f"{sk}:")
        s.G(g)

    def w1_dma(self, step):
        g = S()
        g.I(f"s_add_u32 {sT0}, {sW1B}, {step*55296}\ns_sub_u32 {sT1}, {sT0}, {40*55296}\ns_min_u32 {sT0}, {sT0}, {sT1}\n"
            f"s_add_u32 m0, {sM0B}, {step*4096}\ns_nop 0")
        g.VM(f"buffer_load_dwordx4 v4, {RW1}, {sT0} offen lds", f"w1_{step}")
        return S().G(g)
    def xn_load(self, step):
        g = S()
        g.I(f"s_add_u32 {sT0}, {sXNB}, {step*1024}\ns_sub_u32 {sT1}, {sT0}, 40960\ns_min_u32 {sT0}, {sT0}, {sT1}")
        g.VM(f"buffer_load_dwordx4 {a(4*step,4)}, v5, {RWS}, {sT0} offen sc1", f"xn_{step}")
        return S().G(g)
    def w2reg(self, q):
        if q < 24: return a(160 + 4*q, 4)
        if q < 30: return v(232 + 4*(q-24), 4)
        return a(4*(q-30), 4)
    def w2p_load(self, q):
        s_, nb = divmod(q, 5)
        g = S()
        g.I(f"s_mov_b32 {sT0}, {s_*40960 + nb*1024}")
        g.VM(f"buffer_load_dwordx4 {self.w2reg(q)}, v6, {RWS}, {sT0} offen sc1", f"w2p_{q}")
        return S().G(g)
    def param_loads(self, s, base, vaddr, vaddr2, tag):
        for i, p in enumerate((sARE, sAIM, sBRE, sBIM, sCRE, sCIM)):
            s.VM(f"global_load_short_d16_hi {v(base+i)}, {v(vaddr)}, {p}", tag)
        s.VM(f"global_load_short_d16_hi {v(base+6)}, {v(vaddr2)}, {sLDT}", tag)
        s.VM(f"global_load_short_d16_hi {v(base+7)}, {v(vaddr2)}, {sDSK}", tag)
    def u_loads(self, s, dst, vaddr, tag):
        s.I(f"s_mov_b32 {sT0}, {32*10240}")
        s.VM(f"buffer_load_dwordx4 {v(dst,4)}, {v(vaddr)}, {RWS}, 0 offen sc1", tag)
        s.VM(f"buffer_load_dwordx4 {v(dst+4,4)}, {v(vaddr)}, {RWS}, {sT0} offen sc1", tag)
    def u_addr(self, s, vaddr, vt, spair):
        s.I(f"""s_lshl_b32 {sT0}, {sW}, 6
        v_lshrrev_b32 {v(vaddr)}, 1, v1
        v_add_u32 {v(vaddr)}, {sT0}, {v(vaddr)}
        v_mul_u32_u24 {v(vaddr)}, 10240, {v(vaddr)}
        v_and_b32 {v(vt)}, 1, v1
        v_lshl_add_u32 {v(vaddr)}, {v(vt)}, 4, {v(vaddr)}
        s_lshl_b32 {sT0}, {spair}, 5
        s_add_u32 {sT0}, {sT0}, {WS_G}
        v_add_u32 {v(vaddr)}, {sT0}, {v(vaddr)}""")

    def w2unit_dma(self, s, sunit, ldsbase, tag):
        s.I(f"""s_mul_i32 {sT0}, {sunit}, 52429
        s_lshr_b32 {sT0}, {sT0}, 18
        s_mul_i32 {sT1}, {sT0}, 5
        s_sub_u32 {sT1}, {sunit}, {sT1}
        s_mul_i32 {sT0}, {sT0}, {32*1280}
        s_lshl_b32 {sT1}, {sT1}, 8
        s_add_u32 {sT0}, {sT0}, {sT1}
        s_mul_i32 {sT1}, {sW}, {8*1280}
        s_add_u32 {sT0}, {sT0}, {sT1}
        s_lshl_b32 {sT2}, {sW}, 11
        s_add_u32 m0, {sT2}, {ldsbase}
        s_add_u32 {sT1}, {sT0}, {4*1280}""")
        s.VM(f"buffer_load_dwordx4 v7, {RW2}, {sT0} offen lds", tag)
        s.I(f"s_add_u32 m0, {sT2}, {ldsbase+1024}\ns_nop 0")
        s.VM(f"buffer_load_dwordx4 v3, {RW2}, {sT1} offen lds", tag)
    def w2unit_out(self, s, sunit, ldsbase, va, vd, opt=False):
        for b in range(2):
            for hh in range(2):
                s.DS(f"ds_read_b64_tr_b16 {v(vd+4*b+2*hh,2)}, {v(va+b)} offset:{hh*2048}", "w2u")
        s.I(f"s_lshl_b32 {sT0}, {sunit}, 13\ns_lshl_b32 {sT1}, {sW}, 11\ns_add_u32 {sT0}, {sT0}, {sT1}\ns_add_u32 {sT0}, {sT0}, {WS_W2F}")
        s.WL("w2u")
        s.VM(f"buffer_store_dwordx4 {v(vd,4)}, v2, {RWS}, {sT0} offen sc1", "p1st", opt)
        s.VM(f"buffer_store_dwordx4 {v(vd+4,4)}, v2, {RWS}, {sT0} offen offset:1024 sc1", "p1st", opt)

    def cmul(self, s, r, x, y, t):
        s.I(f"v_pk_mul_f32 {v(t,2)}, {v(x,2)}, {v(y,2)} op_sel:[0,0] op_sel_hi:[1,0]")
        s.I(f"v_pk_fma_f32 {v(r,2)}, {v(x,2)}, {v(y,2)}, {v(t,2)} op_sel:[1,1,0] op_sel_hi:[0,1,1] neg_lo:[1,0,0]")

    def kgen_chains(self, P, T, tag):
        s = S()
        Are, Aim, Bre, Cre, ldt = P, P+1, P+2, P+4, P+6
        dt, a2, bq, t0, t1, t2 = T, T+1, T+2, T+3, T+4, T+5
        z1, z16, w, tmp, tmp2, q, odd = T+6, T+8, T+10, T+12, T+14, T+16, T+18
        E = T + 20
        pk0, pk1 = T+38, T+39
        vw = T + 46
        s.I(f"""s_lshr_b32 {sT0}, {sW}, 1
        s_mul_i32 {sT0}, {sT0}, {TCH}
        s_and_b32 {sT1}, {sW}, 1
        s_lshl_b32 {sT1}, {sT1}, 8
        s_add_u32 {sT0}, {sT0}, {sT1}
        s_add_u32 {sT0}, {sT0}, {L_TBL}
        v_lshl_add_u32 {v(vw)}, v1, 2, {sT0}""")
        s.WV(tag)
        s.I(f"""v_mul_f32 {v(dt)}, {hx(f2u(LOG2E))}, {v(ldt)}
        v_exp_f32 {v(dt)}, {v(dt)}
        v_cvt_pk_bf16_f32 {v(dt)}, {v(dt)}, {v(dt)}
        v_lshlrev_b32 {v(dt)}, 16, {v(dt)}
        v_mul_f32 {v(a2)}, {v(dt)}, {v(Are)}
        v_mul_f32 {v(bq)}, {v(dt)}, {v(Aim)}
        v_mul_f32 {v(a2)}, {hx(f2u(LOG2E))}, {v(a2)}
        v_mul_f32 {v(bq)}, {hx(f2u(0.5/math.pi))}, {v(bq)}""")
        for z, e in ((z1, 1.0), (z16, 16.0), (w, 256.0)):
            s.I(f"""v_mul_f32 {v(t0)}, {hx(f2u(e))}, {v(a2)}
            v_mul_f32 {v(t1)}, {hx(f2u(e))}, {v(bq)}
            v_exp_f32 {v(t0)}, {v(t0)}
            v_fract_f32 {v(t1)}, {v(t1)}
            v_cos_f32 {v(z)}, {v(t1)}
            v_sin_f32 {v(z+1)}, {v(t1)}
            v_mul_f32 {v(z)}, {v(t0)}, {v(z)}
            v_mul_f32 {v(z+1)}, {v(t0)}, {v(z+1)}""")
        self.cmul(s, E, Bre, Cre, tmp)
        s.I(f"v_mul_f32 {v(E)}, {v(dt)}, {v(E)}\nv_mul_f32 {v(E+1)}, {v(dt)}, {v(E+1)}")
        cnt = [0]
        def put(row, r, isP):
            pk = pk0 + (cnt[0] % 6); cnt[0] += 1
            s.I(f"v_cvt_pk_bf16_f32 {v(pk)}, {v(r)}, {'-' if isP else ''}{v(r+1)}")
            s.DS(f"ds_write_b32 {v(vw)}, {v(pk)} offset:{row*TROW}", "tbl")
        put(0, E, True)
        s.I(f"v_mov_b32 {v(t2)}, 0x3f80")
        s.DS(f"ds_write_b32 {v(vw)}, {v(t2)} offset:{47*TROW}", "tbl")
        put(48, z16, False)
        for i in range(1, 17):
            src = E + (i-1) if (i-1) % 2 == 0 else odd
            dst = E + i if i % 2 == 0 else odd
            self.cmul(s, dst, src, z1, tmp)
            if 2 <= i <= 15:
                self.cmul(s, q, z16 if i == 2 else q, z16, tmp2)
            if i <= 15: put(i, dst, True)
            if 2 <= i <= 15: put(47 + i, q, False)
        row = 16
        for t in range(1, 8):
            step = 2 if t == 1 else (4 if t <= 3 else 8)
            for k, i in enumerate(range(0, 17, step)):
                self.cmul(s, E + i, E + i, w, tmp if k % 2 == 0 else tmp2)
                put(row, E + i, True); row += 1
        assert row == 47
        return s

    def kgen_mfma(self, P, T, KEEP):
        s = S()
        acc = T; ad = T + 16; aq = T + 20; t0 = T + 21; t1 = T + 22; dk = T + 23; fr = T + 24
        s.I(f"""s_lshr_b32 {sT0}, {sW}, 1
        s_mul_i32 {sT0}, {sT0}, {TCH}
        s_add_u32 {sT0}, {sT0}, {L_TBL}
        v_lshrrev_b32 {v(t0)}, 4, v1
        v_lshl_add_u32 {v(t0)}, {v(t0)}, 4, {sT0}
        v_and_b32 {v(t1)}, 15, v1
        v_add_u32 {v(aq)}, 47, {v(t1)}
        v_mul_u32_u24 {v(aq)}, {TROW}, {v(aq)}
        v_add_u32 {v(aq)}, {v(aq)}, {v(t0)}
        v_sub_u32 {v(t1)}, 15, {v(t1)}
        v_cvt_f32_u32 {v(t1)}, {v(t1)}
        v_mul_f32 {v(t1)}, 0x3e800000, {v(t1)}
        s_and_b32 {sT2}, {sW}, 1""")
        base0 = (0, 16, 25, 30); sc0 = (4.0, 2.0, 1.0, 1.0)
        for b in range(4):
            s.I(f"""s_cmp_eq_u32 {sT2}, 0
            s_cselect_b32 {sT0}, {sc0[b]}, 0.5
            s_cselect_b32 {sT1}, {base0[b]}, {35+3*b}
            v_mul_f32 {v(ad+b)}, {sT0}, {v(t1)}
            v_rndne_f32 {v(ad+b)}, {v(ad+b)}
            v_cvt_u32_f32 {v(ad+b)}, {v(ad+b)}
            v_add_u32 {v(ad+b)}, {sT1}, {v(ad+b)}
            v_mul_u32_u24 {v(ad+b)}, {TROW}, {v(ad+b)}
            v_add_u32 {v(ad+b)}, {v(ad+b)}, {v(t0)}""")
        s.I(f"""v_and_b32 {v(t0)}, 127, v0
        v_cmp_eq_u32 vcc, 48, {v(t0)}
        v_cndmask_b32 {v(dk)}, 0, {v(P+7)}, vcc""")
        pre = s; s = S()
        def reads(ks):
            o = fr + 20 * (ks % 2)
            r = S()
            r.DS(f"ds_read_b128 {v(o,4)}, {v(aq)} offset:{ks*64}", f"kq{ks}")
            for b in range(4):
                r.DS(f"ds_read_b128 {v(o+4+4*b,4)}, {v(ad+b)} offset:{ks*64}", f"kp{ks}_{b}")
            return r
        s += reads(0)
        for ks in range(8):
            if ks + 1 < 8: s += reads(ks + 1)
            o = fr + 20 * (ks % 2)
            for b in range(4):
                s.WL(f"kp{ks}_{b}")
                c = "0" if ks == 0 else v(acc+4*b, 4)
                s.I(f"v_mfma_f32_16x16x32_bf16 {v(acc+4*b,4)}, {v(o+4+4*b,4)}, {v(o,4)}, {c}")
        s.I(f"""s_lshr_b32 {sT0}, {sW}, 1
        s_mul_i32 {sT0}, {sT0}, {RSTS}
        s_lshl_b32 {sT1}, {sT2}, 11
        s_add_u32 {sT3}, {sT0}, {L_RST}
        s_sub_u32 {sT0}, {sT3}, {sT1}
        s_add_u32 {sT0}, {sT0}, {2*2032 - 3*512}
        v_and_b32 {v(t0)}, 15, v1
        v_lshlrev_b32 {v(t0)}, 5, {v(t0)}
        v_sub_u32 {v(t0)}, {sT0}, {v(t0)}
        v_lshrrev_b32 {v(t1)}, 4, v1
        v_lshl_add_u32 {v(t0)}, {v(t1)}, 3, {v(t0)}
        v_mov_b32 {v(fr)}, 0
        v_mov_b32 {v(fr+1)}, 0
        v_mov_b32 {v(t1)}, {sT3}""")
        s.DS(f"ds_write_b64 {v(t1)}, {v(fr,2)} offset:4096", "rst")
        s.I(f"v_add_f32 {v(acc+3)}, {v(acc+3)}, {v(dk)}")
        for b in range(4):
            s.I(f"v_cvt_pk_bf16_f32 {v(fr+2+2*b)}, {v(acc+4*b)}, {v(acc+4*b+1)}\nv_cvt_pk_bf16_f32 {v(fr+3+2*b)}, {v(acc+4*b+2)}, {v(acc+4*b+3)}")
            s.DS(f"ds_write_b64 {v(t0)}, {v(fr+2+2*b,2)} offset:{(3-b)*512}", "rst")
        s.I(f"s_add_u32 {sT0}, {sT3}, {sT1}\nv_lshl_add_u32 {v(t0)}, v1, 5, {sT0}")
        s.WL0()
        post = S()
        post.DS(f"ds_read_b128 {v(KEEP,4)}, {v(t0)}", "keep")
        post.DS(f"ds_read_b128 {v(KEEP+4,4)}, {v(t0)} offset:16", "keep")
        post.DS(f"ds_read_b64 {v(KEEP+8,2)}, {v(t0)} offset:32", "keep")
        return pre, s, post

    def conv_prep(self, KEEP, U, T, utag):
        s = S()
        ad = T + 8; t0 = T + 9; z = T + 10
        s.I(f"""s_lshr_b32 {sT2}, {sW}, 1
        s_mul_i32 {sT2}, {sT2}, {CHS}
        s_and_b32 {sT3}, {sW}, 1
        s_lshl_b32 {sT1}, {sT3}, 11
        s_add_u32 {sT1}, {sT1}, {sT2}
        v_lshl_add_u32 {v(ad)}, v1, 5, {sT1}""")
        s.DS(f"ds_write_b128 {v(ad)}, {v(KEEP,4)}", "cp")
        s.DS(f"ds_write_b128 {v(ad)}, {v(KEEP+4,4)} offset:16", "cp")
        for cp in (1, 2, 3):
            for hh in range(2):
                g = S()
                for i in range(4):
                    k = 4*hh + i; d = T + 4*hh + i
                    if cp == 1: g.I(f"v_alignbit_b32 {v(d)}, {v(KEEP+k+1)}, {v(KEEP+k)}, 16")
                    if cp == 2: g.I(f"v_mov_b32 {v(d)}, {v(KEEP+k+1)}")
                    if cp == 3: g.I(f"v_alignbit_b32 {v(d)}, {v(KEEP+k+2)}, {v(KEEP+k+1)}, 16")
                g.DS(f"ds_write_b128 {v(ad)}, {v(T+4*hh,4)} offset:{cp*KS+16*hh}", "cp")
                s.G(g)
        g = S()
        g.I(f"""s_lshr_b32 {sT2}, {sW}, 1
        s_mul_i32 {sT2}, {sT2}, {CHS}
        s_and_b32 {sT3}, {sW}, 1
        v_mov_b32 {v(z)}, 0
        v_mov_b32 {v(z+1)}, 0
        s_add_u32 {sT0}, {sT3}, 57
        v_min_u32 {v(t0)}, {sT0}, v1
        s_mul_i32 {sT0}, {sT3}, {UBO-UAO}
        s_add_u32 {sT0}, {sT0}, {sT2}
        v_lshl_add_u32 {v(t0)}, {v(t0)}, 3, {sT0}""")
        g.DS(f"ds_write_b64 {v(t0)}, {v(z,2)} offset:{UAO}", "cp")
        g.I(f"""v_bfe_u32 {v(t0)}, v1, 3, 2
        v_mul_u32_u24 {v(t0)}, {KS}, {v(t0)}
        v_and_b32 {v(ad)}, 7, v1
        v_lshl_add_u32 {v(t0)}, {v(ad)}, 3, {v(t0)}
        v_add_u32 {v(t0)}, {sT2}, {v(t0)}""")
        g.DS(f"ds_write_b64 {v(t0)}, {v(z,2)} offset:4096", "cp")
        s.G(g)
        g = S()
        g.I(f"""v_and_b32 {v(t0)}, 1, v1
        v_mul_u32_u24 {v(t0)}, {CHS}, {v(t0)}
        v_lshrrev_b32 {v(ad)}, 1, v1
        v_lshl_add_u32 {v(t0)}, {v(ad)}, 4, {v(t0)}
        s_lshl_b32 {sT0}, {sW}, 10
        v_add_u32 {v(t0)}, {sT0}, {v(t0)}""")
        g.WV(utag)
        for i in range(2):
            g.DS(f"ds_write_b128 {v(t0)}, {v(U+4*i,4)} offset:{UAO+464+512*i}", "cp")
            g.DS(f"ds_write_b64 {v(t0)}, {v(U+4*i,2)} offset:{UBO+472+512*i}", "cp")
            g.DS(f"ds_write_b64 {v(t0)}, {v(U+4*i+2,2)} offset:{UBO+480+512*i}", "cp")
        s.G(g)
        return s

    def conv_addr(self, vA, vB, t0):
        s = S()
        s.I(f"""s_lshr_b32 {sT2}, {sW}, 1
        s_mul_i32 {sT2}, {sT2}, {CHS}
        s_and_b32 {sT3}, {sW}, 1
        s_lshl_b32 {sT3}, {sT3}, 8
        s_sub_u32 {sT2}, {sT2}, {sT3}
        v_and_b32 {v(t0)}, 3, v1
        v_sub_u32 {v(t0)}, 3, {v(t0)}
        v_mul_u32_u24 {v(vA)}, {KS}, {v(t0)}
        v_bfe_u32 {v(t0)}, v1, 2, 2
        v_lshlrev_b32 {v(t0)}, 4, {v(t0)}
        v_sub_u32 {v(vA)}, {v(vA)}, {v(t0)}
        v_and_b32 {v(t0)}, 48, v1
        v_add_u32 {v(vA)}, {v(vA)}, {v(t0)}
        s_add_u32 {sT0}, {sT2}, {4080 - 192 - 3584}
        v_add_u32 {v(vA)}, {sT0}, {v(vA)}
        v_bfe_u32 {v(vB)}, v1, 1, 3
        v_lshl_add_u32 {v(vB)}, {v(vB)}, 6, {v(t0)}
        v_and_b32 {v(t0)}, 1, v1
        v_mul_u32_u24 {v(t0)}, {UBO-UAO}, {v(t0)}
        v_sub_u32 {v(vB)}, {v(vB)}, {v(t0)}
        s_add_u32 {sT0}, {sT2}, {UBO + 464 - 192}
        v_add_u32 {v(vB)}, {sT0}, {v(vB)}""")
        return S().G(s)

    def conv_main(self, vA, vB, ACC, FR):
        def reads(rho):
            o = FR + 64 * (rho % 2); r = S()
            for i in range(8):
                r.DS(f"ds_read_b128 {v(o+4*i,4)}, {v(vA)} offset:{64*(3-rho)+512*(7-i)}", f"cA{rho}_{i}")
                r.DS(f"ds_read_b128 {v(o+32+4*i,4)}, {v(vB)} offset:{64*(3-rho)+512*i}", f"cB{rho}_{i}")
            return r
        order = sorted([(i, j) for i in range(8) for j in range(8) if i + j <= 7], key=lambda p: (max(p), p[0] < p[1], p[0]+p[1]))
        out = []
        for rho in range(4):
            o = FR + 64 * (rho % 2)
            m = S(); first = set()
            for (i, j) in order:
                g = S()
                g.WL(f"cA{rho}_{i}"); g.WL(f"cB{rho}_{j}")
                c = i + j
                cin = v(ACC+4*c, 4)
                if rho == 0 and c not in first: cin = "0"; first.add(c)
                g.I(f"v_mfma_f32_16x16x32_bf16 {v(ACC+4*c,4)}, {v(o+4*i,4)}, {v(o+32+4*j,4)}, {cin}")
                m.G(g)
            if rho == 0:
                r0 = reads(0)
                m = S(r0[:8]) + sprinkle(m, r0[8:], 0, 8)
                m = S(m)
                if rho + 1 < 4: m = sprinkle(m, reads(rho+1), 24, len(m) - 2)
            elif rho + 1 < 4:
                m = sprinkle(m, reads(rho+1), 2, len(m) - 2)
            out.append(S(m))
        return out

    def conv_fin1(self, ACC, T):
        s = S(); t0, t1 = T, T+1
        s.I(f"""v_bfe_u32 {v(t0)}, v1, 1, 2
        v_lshrrev_b32 {v(t1)}, 4, v1
        v_xor_b32 {v(t0)}, {v(t0)}, {v(t1)}
        v_lshlrev_b32 {v(t0)}, 5, {v(t0)}
        v_bfe_u32 {v(t1)}, v1, 1, 3
        v_lshl_add_u32 {v(t0)}, {v(t1)}, 7, {v(t0)}
        v_and_b32 {v(t1)}, 1, v1
        v_lshl_add_u32 {v(t0)}, {v(t1)}, 4, {v(t0)}
        s_lshl_b32 {sT0}, {sW}, 13
        s_add_u32 {sT0}, {sT0}, {L_PART}
        v_add_u32 {v(t0)}, {sT0}, {v(t0)}""")
        for c in range(8):
            s.DS(f"ds_write_b128 {v(t0)}, {v(ACC+4*c,4)} offset:{c*1024}", "cpart")
        s.WL0()
        return s
    def conv_fin2(self, T, spair):
        s = S(); t0, t1 = T+40, T+41
        s.I(f"""v_bfe_u32 {v(t0)}, v1, 2, 2
        v_xor_b32 {v(t0)}, v1, {v(t0)}
        s_lshr_b32 {sT0}, {sW}, 1
        s_lshl_b32 {sT0}, {sT0}, 14
        s_and_b32 {sT1}, {sW}, 1
        s_lshl_b32 {sT1}, {sT1}, 12
        s_add_u32 {sT0}, {sT0}, {sT1}
        s_add_u32 {sT0}, {sT0}, {L_PART}
        v_lshl_add_u32 {v(t0)}, {v(t0)}, 5, {sT0}""")
        for r in range(2):
            for src in range(2):
                for h in range(2):
                    s.DS(f"ds_read_b128 {v(T+16*r+8*src+4*h,4)}, {v(t0)} offset:{src*8192+r*2048+h*16}", f"cf{r}")
        s.I(f"s_lshl_b32 {sT0}, {spair}, 13\ns_lshl_b32 {sT1}, {sW}, 11\ns_add_u32 {sT0}, {sT0}, {sT1}\ns_add_u32 {sT0}, {sT0}, {WS_ST}")
        for r in range(2):
            s.WL(f"cf{r}")
            b = T + 16*r
            for i in range(0, 8, 2):
                s.I(f"v_pk_add_f32 {v(b+i,2)}, {v(b+i,2)}, {v(b+8+i,2)}")
            for i in range(4):
                s.I(f"v_cvt_pk_bf16_f32 {v(T+32+4*r+i)}, {v(b+2*i)}, {v(b+2*i+1)}")
            s.VM(f"buffer_store_dwordx4 {v(T+32+4*r,4)}, v2, {RWS}, {sT0} offen offset:{r*1024} sc1", "sst")
        return s

    def build(self):
        c = self.c
        s = S()
        s.I(f"""s_load_dwordx16 s[4:19], s[0:1], 0
        s_load_dwordx16 s[20:35], s[0:1], 64
        s_load_dwordx2 s[36:37], s[0:1], 128""")
        if c.stamps: s.I(f"s_memtime s[100:101]\ns_memrealtime s[98:99]")
        s.I(f"""s_cmp_ge_u32 s2, 256
        s_cbranch_scc1 L_end
        v_and_b32 v1, 63, v0
        v_lshrrev_b32 v3, 6, v0
        v_lshlrev_b32 v2, 4, v1
        v_readfirstlane_b32 {sW}, v3
        s_and_b32 {sXCD}, s2, 7
        s_lshr_b32 {sSLOT}, s2, 3
        s_lshr_b32 {sT0}, {sXCD}, 1
        s_lshl_b32 {sT0}, {sT0}, 2
        s_and_b32 {sRB}, {sSLOT}, 3
        s_add_u32 {sRB}, {sRB}, {sT0}
        s_and_b32 {sT0}, {sXCD}, 1
        s_mul_i32 {sT0}, {sT0}, 7
        s_lshr_b32 {sCT}, {sSLOT}, 2
        s_add_u32 {sCT}, {sCT}, {sT0}
        s_mul_i32 {sPAIR}, {sXCD}, 40
        s_add_u32 {sPAIR}, {sPAIR}, {sSLOT}
        s_sub_u32 {sT0}, {sSLOT}, 28
        s_lshl_b32 {sT0}, {sT0}, 1
        s_cmp_ge_u32 {sSLOT}, 28
        s_cselect_b32 {sT0}, {sT0}, 0
        s_add_u32 {sPAIR}, {sPAIR}, {sT0}""")
        if c.g2map == "4x8":
            s.I(f"""s_lshl_b32 {sRB64}, {sXCD}, 2
            s_lshr_b32 {sT0}, {sSLOT}, 3
            s_add_u32 {sRB64}, {sRB64}, {sT0}
            s_and_b32 {sCT2}, {sSLOT}, 7""")
        else:
            s.I(f"""s_lshr_b32 {sRB64}, {sXCD}, 1
            s_lshl_b32 {sRB64}, {sRB64}, 3
            s_lshr_b32 {sT0}, {sSLOT}, 2
            s_add_u32 {sRB64}, {sRB64}, {sT0}
            s_and_b32 {sCT2}, {sXCD}, 1
            s_lshl_b32 {sCT2}, {sCT2}, 2
            s_and_b32 {sT0}, {sSLOT}, 3
            s_add_u32 {sCT2}, {sCT2}, {sT0}""")
        XR = 24
        PR = 40
        EP = 36
        s.I(f"""v_lshrrev_b32 v10, 5, v0
        v_and_b32 v11, 31, v0
        v_mul_u32_u24 v8, 1280, v10
        s_mul_i32 {sT0}, s2, 10240
        v_add_u32 v8, {sT0}, v8
        v_lshl_add_u32 v9, v11, 3, v8
        v_lshl_add_u32 v8, v11, 4, v8
        v_lshrrev_b32 v12, 4, v1
        v_and_b32 v13, 15, v1
        v_lshlrev_b32 v14, 1, v12
        v_xor_b32 v14, v14, v13
        v_mul_u32_u24 v7, 1280, v12
        v_lshl_add_u32 v7, v14, 4, v7
        v_xor_b32 v3, 128, v7
        v_lshlrev_b32 v14, 2, v12
        v_xor_b32 v14, v14, v13
        v_mul_u32_u24 v4, 3456, v12
        v_lshl_add_u32 v4, v14, 4, v4
        s_lshl_b32 {sT0}, {sPAIR}, 9
        v_lshl_add_u32 v15, v0, 1, {sT0}
        s_lshl_b32 {sT0}, {sPAIR}, 2
        s_and_b32 {sT1}, {sW}, 2
        s_add_u32 {sT0}, {sT0}, {sT1}
        v_mov_b32 v16, {sT0}
        v_mov_b32 v17, 0""")
        for i in range(PR, PR + 24): s.I(f"v_mov_b32 {v(i)}, 0")
        s.I(f"""s_mul_i32 {sT0}, {sRB}, 5
        s_lshr_b32 {sT0}, {sT0}, 1
        s_lshl_b32 {sXNB}, {sT0}, 10
        s_mul_i32 {sW1B}, {sT0}, 55296
        s_mul_i32 {sT1}, {sW}, {4*3456}
        s_add_u32 {sW1B}, {sW1B}, {sT1}
        s_lshl_b32 {sT1}, {sCT}, 8
        s_add_u32 {sW1B}, {sW1B}, {sT1}
        s_lshl_b32 {sM0B}, {sW}, 10
        s_mov_b32 s42, {WS_SIZE}
        s_mov_b32 s43, 0x20000
        s_mov_b32 s46, {640*3456}
        s_mov_b32 s47, 0x20000
        s_mov_b32 s50, {1728*1280}
        s_mov_b32 s51, 0x20000
        s_mov_b32 s54, {1728*2}
        s_mov_b32 s55, 0x20000
        s_mov_b32 s58, {2048*1280}
        s_mov_b32 s59, 0x20000
        s_mov_b32 s62, {2048*1280}
        s_mov_b32 s63, 0x20000
        s_waitcnt lgkmcnt(0)""")
        s.VM(f"global_load_dwordx4 {v(XR,4)}, v8, {sX}", "x")
        s.VM(f"global_load_dwordx4 {v(XR+4,4)}, v8, {sX} offset:512", "x")
        s.VM(f"global_load_dwordx2 {v(XR+8,2)}, v9, {sX} offset:1024", "x")
        s.I("""s_mov_b64 s[40:41], s[36:37]
        s_mov_b64 s[44:45], s[24:25]
        s_mov_b64 s[48:49], s[28:29]
        s_mov_b64 s[52:53], s[26:27]
        s_mov_b64 s[56:57], s[4:5]
        s_mov_b64 s[60:61], s[32:33]""")
        self.stamp(s, 0)
        self.w2unit_dma(s, "s2", L_W2S, "w2u")
        self.param_loads(s, PR, 15, 16, "par0")
        s.VM(f"buffer_load_dwordx2 {v(EP,2)}, v17, {RWS}, 0 offen sc1", "ep")
        s.I(f"s_cmp_ge_u32 {sSLOT}, 28\ns_cbranch_scc1 L_sp0")
        for st in range(3):
            g = self.w1_dma(st)
            for it in flat(g):
                if it.kind == "vm": it.opt = True
            s += g
        s.I("s_branch L_j0\nL_sp0:")
        g = S()
        g.I(f"s_add_u32 {sT3}, s2, 32\ns_min_u32 {sT3}, {sT3}, 269")
        self.w2unit_dma(g, sT3, 0, "w2u2")
        g.I("v_add_u32 v15, 512, v15\nv_add_u32 v16, 4, v16")
        self.param_loads(g, PR + 8, 15, 16, "par1")
        g.I("v_add_u32 v15, 512, v15\nv_add_u32 v16, 4, v16")
        self.param_loads(g, PR + 16, 15, 16, "par2")
        for it in flat(g):
            if it.kind == "vm": it.opt = True
        s += g
        s.I("L_j0:")
        s.I(f"""v_mul_u32_u24 v10, {LNS}, v10
        v_add_u32 v10, {L_LNI}, v10
        v_lshl_add_u32 v20, v11, 3, v10
        v_lshl_add_u32 v10, v11, 4, v10
        v_mov_b32 v11, v20
        v_and_b32 v20, 7, v1
        v_lshrrev_b32 v21, 3, v1
        v_mul_u32_u24 v12, {LNS}, v20
        v_lshl_add_u32 v12, v21, 4, v12
        s_lshl_b32 {sT0}, {sW}, 7
        s_add_u32 {sT0}, {sT0}, {L_LNI}
        v_add_u32 v12, {sT0}, v12
        v_lshlrev_b32 v14, 4, v20
        v_lshl_add_u32 v14, v21, 9, v14
        v_bfe_u32 v20, v1, 2, 2
        v_mul_u32_u24 v13, {LNS}, v20
        v_lshrrev_b32 v21, 4, v1
        v_lshl_add_u32 v13, v21, 5, v13
        v_and_b32 v22, 3, v1
        v_lshl_add_u32 v13, v22, 3, v13
        v_add_u32 v13, {sT0}, v13
        v_bfe_u32 v20, v1, 2, 3
        v_lshrrev_b32 v21, 5, v1
        v_lshl_add_u32 v21, v21, 4, v20
        v_lshlrev_b32 v21, 8, v21
        v_lshl_add_u32 v21, v22, 3, v21
        s_lshl_b32 {sT0}, {sW}, 1
        v_xor_b32 v20, {sT0}, v20
        v_lshl_add_u32 v18, v20, 5, v21
        v_xor_b32 v19, 32, v18
        v_add_u32 v22, {L_W2S}, v18
        v_add_u32 v23, {L_W2S}, v19""")
        F = 64
        s.WV("x")
        self.stamp(s, 1)
        for i in range(10):
            s.I(f"v_lshlrev_b32 {v(F+2*i)}, 16, {v(XR+i)}\nv_and_b32 {v(F+2*i+1)}, 0xffff0000, {v(XR+i)}")
        def reduce32(r, t):
            for sh in (8, 4, 2, 1):
                s.I(f"v_add_f32_dpp {v(r)}, {v(r)}, {v(r)} row_ror:{sh} row_mask:0xf bank_mask:0xf")
            s.I(f"v_mov_b32 {v(t)}, {v(r)}\nv_permlane16_swap_b32 {v(r)}, {v(t)}\nv_add_f32 {v(r)}, {v(r)}, {v(t)}")
        T = 84
        s.I(f"v_pk_add_f32 {v(T,2)}, {v(F,2)}, {v(F+2,2)}\nv_pk_add_f32 {v(T+2,2)}, {v(F+4,2)}, {v(F+6,2)}")
        for i in range(4, 10):
            d = T + 2*(i % 2)
            s.I(f"v_pk_add_f32 {v(d,2)}, {v(d,2)}, {v(F+2*i,2)}")
        s.I(f"v_pk_add_f32 {v(T,2)}, {v(T,2)}, {v(T+2,2)}\nv_add_f32 {v(T)}, {v(T)}, {v(T+1)}")
        reduce32(T, T+1)
        s.I(f"v_mul_f32 {v(T+4)}, {hx(f2u(1/640))}, {v(T)}")
        for i in range(10):
            s.I(f"v_pk_add_f32 {v(F+2*i,2)}, {v(F+2*i,2)}, {v(T+4,2)} op_sel_hi:[1,0] neg_lo:[0,1] neg_hi:[0,1]")
        s.I(f"v_pk_mul_f32 {v(T,2)}, {v(F,2)}, {v(F,2)}\nv_pk_mul_f32 {v(T+2,2)}, {v(F+2,2)}, {v(F+2,2)}")
        for i in range(2, 10):
            d = T + 2*(i % 2)
            s.I(f"v_pk_fma_f32 {v(d,2)}, {v(F+2*i,2)}, {v(F+2*i,2)}, {v(d,2)}")
        s.I(f"v_pk_add_f32 {v(T,2)}, {v(T,2)}, {v(T+2,2)}\nv_add_f32 {v(T)}, {v(T)}, {v(T+1)}")
        reduce32(T, T+1)
        s.I(f"""v_mul_f32 {v(T)}, {hx(f2u(1/640))}, {v(T)}
        v_cvt_pk_bf16_f32 {v(T)}, {v(T)}, {v(T+4)}
        v_and_b32 {v(T+5)}, 0xffff0000, {v(T)}
        v_lshlrev_b32 {v(T)}, 16, {v(T)}
        v_add_f32 {v(T)}, {hx(f2u(1e-5))}, {v(T)}
        v_cvt_pk_bf16_f32 {v(T)}, {v(T)}, {v(T)}
        v_lshlrev_b32 {v(T)}, 16, {v(T)}
        v_sqrt_f32 {v(T)}, {v(T)}
        v_sub_f32 {v(T+5)}, {v(T+4)}, {v(T+5)}
        v_cvt_pk_bf16_f32 {v(T)}, {v(T)}, {v(T)}
        v_lshlrev_b32 {v(T)}, 16, {v(T)}
        v_rcp_f32 {v(T)}, {v(T)}
        v_mul_f32 {v(T+2)}, {v(T+5)}, {v(T)}""")
        for i in range(10):
            s.I(f"v_pk_fma_f32 {v(F+2*i,2)}, {v(F+2*i,2)}, {v(T,2)}, {v(T+2,2)} op_sel_hi:[1,0,0]")
            s.I(f"v_cvt_pk_bf16_f32 {v(XR+i)}, {v(F+2*i)}, {v(F+2*i+1)}")
        s.DS(f"ds_write_b128 v10, {v(XR,4)}", "lni")
        s.DS(f"ds_write_b128 v10, {v(XR+4,4)} offset:512", "lni")
        s.DS(f"ds_write_b64 v11, {v(XR+8,2)} offset:1024", "lni")
        s.WV("w2u")
        s.WL0()
        s.I("s_barrier")
        self.stamp(s, 2)
        D = 64
        for i in range(2):
            s.DS(f"ds_read_b128 {v(D+8*i,4)}, v12 offset:{i*512}", f"xf{i}")
            s.DS(f"ds_read_b64_tr_b16 {v(D+8*i+4,2)}, v13 offset:{i*512}", f"xf{i}")
            s.DS(f"ds_read_b64_tr_b16 {v(D+8*i+6,2)}, v13 offset:{i*512+4*LNS}", f"xf{i}")
        s.I(f"""s_lshr_b32 {sT2}, s2, 2
        s_mul_i32 {sT2}, {sT2}, 40960
        s_and_b32 {sT0}, s2, 3
        s_lshl_b32 {sT0}, {sT0}, 7
        s_add_u32 {sT2}, {sT2}, {sT0}
        s_lshl_b32 {sT0}, {sW}, 12
        s_add_u32 {sT2}, {sT2}, {sT0}
        s_add_u32 {sT2}, {sT2}, {WS_XF}
        s_mul_i32 {sT3}, s2, 10240
        s_add_u32 {sT3}, {sT3}, {sM0B}
        s_add_u32 {sT3}, {sT3}, {WS_G}""")
        for i in range(2):
            s.WL(f"xf{i}")
            s.VM(f"buffer_store_dwordx4 {v(D+8*i,4)}, v14, {RWS}, {sT2} offen sc1", "p1st")
            s.VM(f"buffer_store_dwordx4 {v(D+8*i+4,4)}, v2, {RWS}, {sT3} offen sc1", "p1st")
            s.I(f"s_add_u32 {sT2}, {sT2}, 16384\ns_add_u32 {sT3}, {sT3}, 4096")
        s.I(f"s_cmp_ge_u32 {sW}, 2\ns_cbranch_scc1 L_sk3")
        s.DS(f"ds_read_b128 {v(D+16,4)}, v12 offset:1024", "xf2")
        s.DS(f"ds_read_b64_tr_b16 {v(D+20,2)}, v13 offset:1024", "xf2")
        s.DS(f"ds_read_b64_tr_b16 {v(D+22,2)}, v13 offset:{1024+4*LNS}", "xf2")
        s.WL0()
        s.VM(f"buffer_store_dwordx4 {v(D+16,4)}, v14, {RWS}, {sT2} offen sc1", "p1st", True)
        s.VM(f"buffer_store_dwordx4 {v(D+20,4)}, v2, {RWS}, {sT3} offen sc1", "p1st", True)
        s.I("L_sk3:")
        self.w2unit_out(s, "s2", L_W2S, 22, D+24)
        s.WV("ep")
        s.I(f"""v_readfirstlane_b32 s70, {v(EP)}
        v_readfirstlane_b32 s71, {v(EP+1)}
        s_nop 1
        s_mul_i32 s70, s70, 0x9E3779B1
        s_add_u32 s70, s70, 0x7F4A7C15
        s_add_u32 s71, s71, 1
        s_cmp_ge_u32 {sSLOT}, 28
        s_cbranch_scc1 L_spare""")
        self.stamp(s, 3)
        main = self.main_path(PR)
        spare = self.spare_path(PR)
        g2 = self.gemm2()
        lines = resolve(S(s + main + g2))
        pre = resolve(S(s))
        sp = resolve(S(s + spare))[len(pre):]
        lines = lines + ["s_endpgm"] + sp
        lines, n = fix_hazards(lines)
        return lines

    def main_path(self, PR):
        s = S()
        KEEP = 8; U = 24
        ch = self.kgen_chains(PR, 96, "par0")
        dm = S()
        for st in range(3, 18): dm += self.w1_dma(st)
        s += S(dm[:8]); s += sprinkle(ch, dm[8:], len(ch)//2)
        pre, mf, post = self.kgen_mfma(PR, 160, KEEP)
        s += pre
        s.WV("p1st"); s.WL0(); s.I("s_barrier")
        self.stamp(s, 4)
        s.I(f"s_lshl_b32 {sT0}, s2, 7\ns_add_u32 {sT0}, {sT0}, {WS_F1}")
        self.flag_set(s, 96, sT0, True)
        for st in range(37, 40): s += self.w1_dma(st)
        s.I(f"v_lshrrev_b32 v20, 5, v1\ns_lshl_b32 {sT0}, {sCT}, 8\nv_lshl_add_u32 v20, v20, 3, {sT0}")
        for i in range(16):
            s.VM(f"buffer_load_dwordx2 {v(128+2*i,2)}, v20, {RB1}, 0 offen offset:{16*i}", "b1")
        s += mf
        s.I("s_barrier")
        self.stamp(s, 5)
        s += post
        for st in range(18, 34): s += self.w1_dma(st)
        s.I(f"""s_lshl_b32 {sT0}, {sRB}, 2
        s_add_u32 {sT0}, {sT0}, {sW}
        s_mul_i32 {sT0}, {sT0}, 40960
        s_add_u32 {sT0}, {sT0}, {WS_XF}
        v_add_u32 v5, {sT0}, v2
        v_bfe_u32 v18, v1, 2, 2
        v_lshrrev_b32 v19, 5, v1
        v_lshl_add_u32 v19, v19, 3, v18
        v_lshlrev_b32 v19, 8, v19
        v_bfe_u32 v20, v1, 4, 1
        v_lshl_add_u32 v19, v20, 5, v19
        v_and_b32 v20, 3, v1
        v_lshl_add_u32 v19, v20, 3, v19
        v_lshl_add_u32 v20, v18, 6, v19
        v_xor_b32 v21, 64, v20
        v_xor_b32 v22, 128, v20
        v_xor_b32 v23, 192, v20""")
        s += self.g2_addr()
        self.u_addr(s, 7, 18, sPAIR)
        s.WV("b1")
        ACC = 64
        for i in range(32):
            s.I(f"v_lshlrev_b32 {v(ACC+2*i)}, 16, {v(128+i)}\nv_and_b32 {v(ACC+2*i+1)}, 0xffff0000, {v(128+i)}")
        s.I(f"s_cmp_lg_u32 {sW}, 0\ns_cbranch_scc1 L_np1\ns_lshl_b32 {sT0}, {sRB}, 11\ns_add_u32 {sT0}, {sT0}, {WS_F1}")
        self.flag_addr(s, 18, sT0, 16)
        s.VM(f"buffer_load_dwordx2 v[32:33], v18, {RWS}, 0 offen sc1", "f1", True)
        self.flag_check(s, 32, 18, "f1")
        s.I("L_np1:")
        s.WL0(); s.I("s_barrier")
        self.stamp(s, 6)
        for st in range(34, 37): s += self.w1_dma(st)
        NUP = 8
        for st in range(NUP): s += self.xn_load(st)
        s.I(f"s_lshl_b32 {sT0}, {sXCD}, 7\ns_add_u32 {sT0}, {sT0}, {WS_F1ALL}\nv_mov_b32 v18, {sT0}")
        s.WV("w1_36"); s.I("s_barrier")
        self.stamp(s, 7)
        W = 128; NB = 3
        def rd(st, fb):
            o = W + 16*(st % NB) + 4*fb; r = S()
            if st in (16, 32): r.I(f"v_add_u32 {v(20+fb)}, 0x10000, {v(20+fb)}")
            for hh in range(2):
                r.DS(f"ds_read_b64_tr_b16 {v(o+2*hh,2)}, {v(20+fb)} offset:{(st%16)*4096+hh*1024}", f"w_{st}_{fb}")
            return r
        LEAD = 6
        seq = [(st, fb) for st in range(40) for fb in range(4)]
        g1 = S()
        for k in range(LEAD): g1 += rd(*seq[k])
        steps = []
        for k, (st, fb) in enumerate(seq):
            g = S()
            if fb == 0: g.WV(f"xn_{st}")
            g.WL(f"w_{st}_{fb}")
            g.I(f"v_mfma_f32_32x32x16_bf16 {v(ACC+16*fb,16)}, {v(W+16*(st%NB)+4*fb,4)}, {a(4*st,4)}, {v(ACC+16*fb,16)}")
            if k + LEAD < len(seq): g += rd(*seq[k+LEAD])
            steps.append(Item("group", tag=list(g)))
        ex = S()
        for st in range(NUP, 40): ex += self.xn_load(st)
        nx = len(ex)
        g = S(); self.flag_issue(g, 32, 18, "f1all"); fa = S().G(g)
        ex = S(ex[:20] + fa + ex[20:])
        ex2 = S()
        g = S(); self.flag_check(g, 32, 18, "f1all"); self.u_loads(g, U, 7, "u"); ex2.G(g)
        NW2A = 24
        for q in range(NW2A): ex2 += self.w2p_load(q)
        body = sprinkle(steps, ex, 0, 84)
        body = sprinkle(body, ex2, 84 + len(ex) + 2, len(body) - 1)
        s += g1; s += S(body)
        s.I("s_barrier")
        self.stamp(s, 8)
        K0, K1, ONE = 34, 36, 38
        c0 = -2 * math.sqrt(2 / math.pi) * LOG2E
        s.I(f"""v_mov_b32 {v(K0)}, {hx(f2u(c0))}
        v_mov_b32 {v(K1)}, {hx(f2u(c0*0.044715))}
        v_mov_b32 {v(ONE)}, 1.0""")
        H = 176; T = 128
        ge = S()
        for p in range(0, 32, 2):
            for pp in (p, p+1):
                x = ACC + 2*pp; t = T + 2*(pp % 2)
                ge.I(f"v_pk_mul_f32 {v(t,2)}, {v(x,2)}, {v(x,2)}")
                ge.I(f"v_pk_fma_f32 {v(t,2)}, {v(t,2)}, {v(K1,2)}, {v(K0,2)} op_sel_hi:[1,0,0]")
                ge.I(f"v_pk_mul_f32 {v(t,2)}, {v(t,2)}, {v(x,2)}")
            for i in range(4): ge.I(f"v_exp_f32 {v(T+i)}, {v(T+i)}")
            for pp in (p, p+1):
                t = T + 2*(pp % 2)
                ge.I(f"v_pk_add_f32 {v(t,2)}, {v(t,2)}, {v(ONE,2)} op_sel_hi:[1,0]")
            for i in range(4): ge.I(f"v_rcp_f32 {v(T+i)}, {v(T+i)}")
            for pp in (p, p+1):
                x = ACC + 2*pp; t = T + 2*(pp % 2)
                ge.I(f"v_pk_mul_f32 {v(t,2)}, {v(t,2)}, {v(x,2)}")
            for pp in (p, p+1):
                t = T + 2*(pp % 2)
                ge.I(f"v_cvt_pk_bf16_f32 {v(H+pp)}, {v(t)}, {v(t+1)}")
        cp = self.conv_prep(KEEP, U, 136, "u")
        cp = S().G(cp[:8]) + cp[8:]
        cp = S(cp) + self.conv_addr(20, 21, 148)
        ge = sprinkle(ge, cp, 4, len(ge) - 10)
        ex = S()
        NW2B = 46
        for q in range(NW2A, NW2B): ex += self.w2p_load(q)
        ge = sprinkle(ge, ex, 0, len(ge) - 20)
        s += S(ge)
        s.I(f"""v_and_b32 v18, 15, v1
        v_lshlrev_b32 v18, 4, v18
        v_bfe_u32 v19, v1, 4, 1
        v_mul_u32_u24 v19, {54*1024}, v19
        v_add_u32 v18, v18, v19
        v_lshrrev_b32 v19, 5, v1
        v_lshl_add_u32 v18, v19, 8, v18
        s_lshl_b32 {sT0}, {sRB}, 2
        s_add_u32 {sT2}, {sT0}, {sW}
        s_mul_i32 {sT0}, {sT2}, {2*54*1024}
        s_lshl_b32 {sT1}, {sCT}, 12
        s_add_u32 {sT0}, {sT0}, {sT1}
        s_add_u32 {sT0}, {sT0}, {WS_HF}""")
        for fb in range(4):
            if fb == 2: s.I(f"s_cmp_eq_u32 {sCT}, 13\ns_cbranch_scc1 L_nohs")
            for cc in range(2):
                s.VM(f"buffer_store_dwordx4 {v(H+8*fb+4*cc,4)}, v18, {RWS}, {sT0} offen offset:{fb*1024+cc*512} sc1", "hst", fb >= 2)
        s.I("L_nohs:")
        s.WL0(); s.I("s_barrier")
        self.stamp(s, 9)
        cl = self.conv_main(20, 21, 64, 96)
        ex = S()
        for q in range(NW2B, 70): ex += self.w2p_load(q)
        s += sprinkle(cl[0], ex[:8], 10)
        s += cl[1]
        g = S()
        g.WV("hst")
        g.I(f"""s_lshl_b32 {sT0}, {sRB}, 2
        s_add_u32 {sT0}, {sT0}, {sW}
        s_mul_i32 {sT0}, {sT0}, 14
        s_add_u32 {sT0}, {sT0}, {sCT}
        s_lshl_b32 {sT0}, {sT0}, 7
        s_add_u32 {sT0}, {sT0}, {WS_F2}""")
        self.flag_set(g, 40, sT0, False)
        c2 = sprinkle(cl[2], S().G(g), 20)
        s += sprinkle(c2, ex[8:16], 24)
        s += sprinkle(cl[3], ex[16:], 0)
        s += self.conv_fin1(64, 40)
        s.I("s_barrier")
        s += self.conv_fin2(96, sPAIR)
        self.stamp(s, 10)
        s.I("L_join:")
        return s

    def g2_addr(self):
        s = S()
        s.I(f"""s_mul_i32 {sT0}, {sW}, {14*40*1024}
        s_mul_i32 {sT1}, {sCT2}, 5120
        s_add_u32 {sT0}, {sT0}, {sT1}
        s_add_u32 {sT0}, {sT0}, {WS_W2F}
        v_add_u32 v6, {sT0}, v2""")
        return s

    def spare_path(self, PR):
        s = S()
        s.I("L_spare:")
        s.WV0(); s.I("s_barrier")
        s.I(f"s_add_u32 {sT3}, s2, 32\ns_min_u32 {sT3}, {sT3}, 269")
        self.w2unit_out(s, sT3, 0, 18, 64)
        KEEPS = (8, 208, 220)
        for r in range(3):
            s += self.kgen_chains(PR + 8*r, 96, "par0")
            pre, mf, post = self.kgen_mfma(PR + 8*r, 144, KEEPS[r])
            s += pre
            if r == 0: s.WV0()
            s.WL0(); s.I("s_barrier")
            if r == 0:
                s.I(f"s_lshl_b32 {sT0}, s2, 7\ns_add_u32 {sT0}, {sT0}, {WS_F1}")
                self.flag_set(s, 96, sT0, True)
            s += mf
            s.I("s_barrier")
            s += post
        s.I(f"s_lshl_b32 {sT0}, {sW}, 13\ns_add_u32 {sT0}, {sT0}, {WS_F1}")
        self.flag_addr(s, 18, sT0, 64)
        self.flag_issue(s, 32, 18, "f1s")
        self.flag_check(s, 32, 18, "f1s")
        s.WL0(); s.I("s_barrier")
        s.I(f"s_cmp_lg_u32 {sSLOT}, 28\ns_cbranch_scc1 L_noagg\ns_lshl_b32 {sT0}, {sXCD}, 7\ns_add_u32 {sT0}, {sT0}, {WS_F1ALL}")
        self.flag_set(s, 96, sT0, True)
        s.I(f"s_cmp_lg_u32 {sXCD}, 0\ns_cbranch_scc1 L_noagg")
        self.flag_set(s, 96, "0", True)
        s.I("L_noagg:")
        s += self.g2_addr()
        self.u_addr(s, 7, 18, sPAIR)
        US = (24, 44, 52)
        for r in range(3):
            self.u_loads(s, US[r], 7, f"u{r}")
            s.I("v_add_u32 v7, 32, v7")
        s += self.conv_addr(20, 21, 18)
        q = 0
        for r in range(3):
            if r:
                for i in range(10): s.I(f"v_mov_b32 {v(8+i)}, {v(KEEPS[r]+i)}")
            if r == 0:
                for i in range(10):
                    s.I(f"v_accvgpr_write_b32 {a(130+i)}, {v(208+i)}\nv_accvgpr_write_b32 {a(140+i)}, {v(220+i)}")
            s += self.conv_prep(8, US[r], 96, f"u{r}")
            s.WL0(); s.I("s_barrier")
            cl = self.conv_main(20, 21, 64, 96)
            n = (24, 24, 14)[r]
            ex = S()
            for qq in range(q, q + n): ex += self.w2p_load(qq)
            q += n
            body = S(cl[0] + cl[1] + cl[2] + cl[3])
            if r:
                g = S(); g.WV("sst"); g.I("s_barrier")
                g.I(f"s_add_u32 {sT0}, {sPAIR}, {-1 & 0xffffffff}\ns_lshl_b32 {sT0}, {sT0}, 7\ns_add_u32 {sT0}, {sT0}, {WS_F3}")
                self.flag_set(g, 40, sT0, True)
                body = sprinkle(body, S().G(g), 100)
            s += sprinkle(body, ex, 10)
            s += self.conv_fin1(64, 40)
            s.I("s_barrier")
            s += self.conv_fin2(96, sPAIR)
            if r < 2:
                s.I(f"s_add_u32 {sPAIR}, {sPAIR}, 1")
                for i in range(10):
                    s.I(f"v_accvgpr_read_b32 {v(KEEPS[r+1]+i)}, {a(130+10*r+i)}")
        for qq in range(q, 70): s += self.w2p_load(qq)
        s.I("s_branch L_join")
        return s

    def gemm2(self):
        c = self.c
        s = S()
        s.I(f"s_mul_i32 {sT0}, {sRB64}, {28*128}\ns_add_u32 {sT0}, {sT0}, {WS_F2}")
        self.flag_addr(s, 18, sT0, 28)
        self.flag_issue(s, 22, 18, "f2")
        s.I(f"""s_mul_i32 {sT0}, {sRB64}, {4*54*1024}
        s_mul_i32 {sT1}, {sW}, {14*1024}
        s_add_u32 {sT0}, {sT0}, {sT1}
        s_add_u32 {sT0}, {sT0}, {WS_HF}
        v_add_u32 v5, {sT0}, v2
        v_lshrrev_b32 v7, 3, v1
        v_lshlrev_b32 v7, 12, v7
        v_and_b32 v8, 7, v1
        v_lshl_add_u32 v7, v8, 4, v7
        s_mul_i32 {sT0}, {sCT2}, {80*4096}
        s_lshl_b32 {sT1}, {sRB64}, 7
        s_add_u32 {sT0}, {sT0}, {sT1}
        s_lshl_b32 {sT1}, {sW}, 15
        s_add_u32 {sT0}, {sT0}, {sT1}
        s_add_u32 {sT0}, {sT0}, {WS_ST}
        v_add_u32 v7, {sT0}, v7
        v_min_u32 v13, 39, v1
        v_mul_u32_u24 v14, 26, v13
        v_lshrrev_b32 v14, 8, v14
        v_mul_u32_u24 v15, 10, v14
        v_sub_u32 v15, v13, v15
        s_lshl_b32 {sT0}, {sW}, 2
        v_add_u32 v14, {sT0}, v14
        v_mul_u32_u24 v8, 1280, v14
        v_lshl_add_u32 v8, v15, 4, v8
        s_mul_i32 {sT0}, {sRB64}, {64*1280}
        s_mul_i32 {sT1}, {sCT2}, 160
        s_add_u32 {sT0}, {sT0}, {sT1}
        v_add_u32 v8, {sT0}, v8
        v_cmp_gt_u32 vcc, 40, v1
        v_mov_b32 v13, 0x7f000000
        v_cndmask_b32 v8, v13, v8, vcc
        v_mul_u32_u24 v10, 336, v14
        v_lshl_add_u32 v10, v15, 5, v10
        v_add_u32 v10, {L_PB}, v10
        v_mul_u32_u24 v11, 1040, v15
        v_lshl_add_u32 v11, v14, 1, v11
        v_add_u32 v11, {L_ST}, v11
        v_lshl_add_u32 v13, v15, 4, {sT1}
        v_and_b32 v9, 15, v1
        v_mul_u32_u24 v9, 336, v9
        v_and_b32 v14, 48, v1
        v_add_u32 v9, v9, v14
        s_mul_i32 {sT0}, {sW}, {PBW}
        s_add_u32 {sT0}, {sT0}, {L_PB}
        v_add_u32 v9, {sT0}, v9
        s_mul_i32 {sT0}, {sW}, 1040
        s_add_u32 {sT0}, {sT0}, {L_ST}
        v_add_u32 v16, {sT0}, v2
        s_mul_i32 {sT0}, {sCT2}, {40*128}
        s_add_u32 {sT0}, {sT0}, {WS_F3}""")
        self.flag_addr(s, 12, sT0, 40)
        s.I(f"s_cmp_eq_u32 {sW}, 3\ns_cselect_b32 {sW1B}, 0, 2048\ns_cmp_lt_u32 {sW}, 2\ns_cselect_b32 {sXNB}, {8*32768}, 0")
        XR = 176; B2 = 192; SV = 200; PT = 208
        for i in range(8): s.I(f"v_mov_b32 {v(SV+i)}, 0")
        self.flag_check(s, 22, 18, "f2")
        self.stamp(s, 11)
        HR = 64; NH = 28
        def hload(k):
            mb, st = divmod(k, 14)
            g = S()
            if st < 12: g.I(f"s_mov_b32 {sT0}, {(mb*54+st)*1024}")
            else: g.I(f"s_add_u32 {sT0}, {sW1B}, {(mb*54+st-2)*1024}")
            g.VM(f"buffer_load_dwordx4 {v(HR+4*(k%NH),4)}, v5, {RWS}, {sT0} offen sc1", f"h_{k}")
            return S().G(g)
        s.I("s_barrier")
        s.I(f"s_lshl_b32 {sT0}, {sPAIR}, 7\ns_add_u32 {sT0}, {sT0}, {WS_F3}")
        self.flag_set(s, 24, sT0, True)
        NUP = 10
        for k in range(NUP): s += hload(k)
        g = S()
        for mb in range(4):
            g.I(f"s_mov_b32 {sT0}, {mb*16*1280}")
            g.VM(f"buffer_load_dwordx4 {v(XR+4*mb,4)}, v8, {RX}, {sT0} offen", f"x{mb}")
        g.VM(f"global_load_dwordx4 {v(PT,4)}, v13, {sB2}", "b2")
        xl = S().G(g)
        def epilogue(mb):
            e = S()
            pb = (mb % 2) * PBS
            def rdp(src, dst):
                for h in range(2):
                    e.DS(f"ds_read_b128 {v(dst+4*h,4)}, v10 offset:{pb+src*PBW+16*h}", f"pp{src}")
            rdp(0, PT); rdp(1, PT+8); rdp(2, PT+16)
            for i in range(8):
                e.DS(f"ds_read_u16_d16_hi {v(SV+i)}, v11 offset:{i*128+mb*32}", "sv")
            e.WL("pp1")
            for i in range(8): e.I(f"v_add_f32 {v(PT+i)}, {v(PT+i)}, {v(PT+8+i)}")
            rdp(3, PT+8)
            e.WL("pp2")
            for i in range(8): e.I(f"v_add_f32 {v(PT+16+i)}, {v(PT+16+i)}, {v(B2+i)}")
            for i in range(8): e.I(f"v_add_f32 {v(PT+i)}, {v(PT+i)}, {v(PT+16+i)}")
            e.WL("pp3")
            for i in range(8): e.I(f"v_add_f32 {v(PT+i)}, {v(PT+i)}, {v(PT+8+i)}")
            for i in range(8): e.I(f"v_mul_f32 {v(PT+8+i)}, {hx(f2u(-LOG2E))}, {v(PT+i)}")
            for i in range(8): e.I(f"v_exp_f32 {v(PT+8+i)}, {v(PT+8+i)}")
            for i in range(8): e.I(f"v_mul_f32 {v(PT+i)}, {v(PT+i)}, {v(SV+i)}")
            for i in range(8): e.I(f"v_add_f32 {v(PT+8+i)}, 1.0, {v(PT+8+i)}")
            for i in range(8): e.I(f"v_rcp_f32 {v(PT+8+i)}, {v(PT+8+i)}")
            e.WV(f"x{mb}")
            for i in range(4):
                e.I(f"v_lshlrev_b32 {v(PT+16+2*i)}, 16, {v(XR+4*mb+i)}\nv_and_b32 {v(PT+17+2*i)}, 0xffff0000, {v(XR+4*mb+i)}")
            for i in range(8): e.I(f"v_fma_f32 {v(PT+i)}, {v(PT+i)}, {v(PT+8+i)}, {v(PT+16+i)}")
            for i in range(4): e.I(f"v_cvt_pk_bf16_f32 {v(XR+4*mb+i)}, {v(PT+2*i)}, {v(PT+2*i+1)}")
            g = S()
            g.I(f"s_mov_b32 {sT0}, {mb*16*1280}")
            g.VM(f"buffer_store_dwordx4 {v(XR+4*mb,4)}, v8, {ROUT}, {sT0} offen", "ost")
            e.G(g)
            return e
        nxt = NUP
        for mb in range(4):
            A = 24 + 20 * (mb % 2)
            m = S()
            for st in range(12):
                k = mb * 14 + st
                for nb in range(5):
                    g = S()
                    if nb == 0: g.WV(f"h_{k}")
                    cin = "0" if st == 0 else v(A+4*nb, 4)
                    g.I(f"v_mfma_f32_16x16x32_bf16 {v(A+4*nb,4)}, {self.w2reg(st*5+nb)}, {v(HR+4*(k%NH),4)}, {cin}")
                    m.G(g)
            ex = S()
            lim = min(56, (mb + 1) * 14 + NUP)
            while nxt < lim: ex += hload(nxt); nxt += 1
            if mb == 0:
                g = S(); self.flag_issue(g, 22, 12, "f3")
                ex = S(ex[:4] + xl + ex[4:10] + S().G(g) + ex[10:])
            m = sprinkle(m, ex, 0, len(m))
            if mb == 1:
                g = S()
                g.WV("b2")
                for i in range(4):
                    g.I(f"v_lshlrev_b32 {v(B2+2*i)}, 16, {v(PT+i)}\nv_and_b32 {v(B2+2*i+1)}, 0xffff0000, {v(PT+i)}")
                self.flag_check(g, 22, 12, "f3")
                g.I(f"s_mov_b32 {sT0}, {4*32768}")
                g.VM(f"buffer_load_dwordx4 {v(PT,4)}, v7, {RWS}, 0 offen sc1", "sl")
                g.VM(f"buffer_load_dwordx4 {v(PT+4,4)}, v7, {RWS}, {sT0} offen sc1", "sl")
                g.VM(f"buffer_load_dwordx4 {v(PT+8,4)}, v7, {RWS}, {sXNB} offen sc1", "sl")
                g2 = S()
                g2.WV("sl")
                for i in range(3):
                    g2.DS(f"ds_write_b128 v16, {v(PT+4*i,4)} offset:{i*4*1040}", "sw")
                m = S(S().G(g) + m + S().G(g2))
            if mb >= 2:
                b = S(); b.WL0(); b.I("s_barrier")
                m = sprinkle(m, S().G(b) + epilogue(mb - 2), 4, len(m))
            s += S(m)
            sk = self.lab("sk")
            s.I(f"s_cmp_eq_u32 {sW}, 3\ns_cbranch_scc1 {sk}")
            for st in (12, 13):
                k = mb * 14 + st
                s.WV(f"h_{k}")
                for nb in range(5):
                    s.I(f"v_mfma_f32_16x16x32_bf16 {v(A+4*nb,4)}, {self.w2reg(st*5+nb)}, {v(HR+4*(k%NH),4)}, {v(A+4*nb,4)}")
            s.I(f"{sk}:\ns_nop 7")
            if mb >= 2:
                s.WL0(); s.I("s_barrier")
            for nb in range(5):
                s.DS(f"ds_write_b128 v9, {v(A+4*nb,4)} offset:{(mb%2)*PBS+nb*64}", "pw")
        self.stamp(s, 12)
        s += epilogue(2)
        s.WL0(); s.I("s_barrier")
        s += epilogue(3)
        if c.stamps:
            s.WV0()
            self.stamp(s, 13)
            s.I(f"s_memrealtime s[38:39]\ns_waitcnt lgkmcnt(0)\ns_mov_b32 s{STAMP0+14}, s38\ns_mov_b32 s{STAMP0+15}, s98")
            s.I(f"s_lshl_b32 {sT0}, s2, 8\ns_lshl_b32 {sT1}, {sW}, 6\ns_add_u32 {sT0}, {sT0}, {sT1}\ns_add_u32 {sT0}, {sT0}, {WS_STAMP}\nv_mov_b32 v40, 0\ns_mov_b64 exec, 1")
            for i in range(16):
                if i < 14: s.I(f"s_sub_u32 s{STAMP0+i}, s{STAMP0+i}, s100")
                s.I(f"v_mov_b32 {v(44+i)}, s{STAMP0+i}")
            for i in range(4):
                s.VM(f"buffer_store_dwordx4 {v(44+4*i,4)}, v40, {RWS}, {sT0} offen offset:{16*i}")
        s.I("L_end:")
        return s

HEADER = open("cdna_kernels/" + NAME + ".s.ref").read().split("; Override launch geometry")[0]
def emit(cfg, path):
    lines = Gen(cfg).build()
    body = "\n".join(l if l.endswith(":") else "    " + l for l in lines)
    txt = HEADER + f"""; @launch grid=(256,1,1) block=(256,1,1) lds={LDS_BYTES}
.amdgcn_target "amdgcn-amd-amdhsa--gfx950"
.text
.globl {NAME}_kernel
.p2align 8
.type {NAME}_kernel,@function
{NAME}_kernel:
{body}
    s_endpgm
.section .rodata,"a"
.p2align 6
.amdhsa_kernel {NAME}_kernel
  .amdhsa_next_free_vgpr 512
  .amdhsa_next_free_sgpr 102
  .amdhsa_accum_offset 256
  .amdhsa_group_segment_fixed_size 0
  .amdhsa_kernarg_size 136
  .amdhsa_user_sgpr_count 2
  .amdhsa_user_sgpr_kernarg_segment_ptr 1
  .amdhsa_system_sgpr_workgroup_id_x 1
.end_amdhsa_kernel
"""
    open(path, "w").write(txt)
    return len(lines)

if __name__ == "__main__":
    c = Cfg()
    out = "cdna_kernels/" + NAME + ".s"
    for arg in sys.argv[1:]:
        k, val = arg.split("=")
        if k == "out": out = val
        else: setattr(c, k, eval(val))
    print(emit(c, out), "lines ->", out)
```

```python
import re

class Item:
    __slots__ = ("kind", "text", "tag", "opt")
    def __init__(self, kind, text=None, tag=None, opt=False):
        self.kind, self.text, self.tag, self.opt = kind, text, tag, opt

class S(list):
    def I(self, text):
        for ln in text.strip().split("\n"):
            ln = ln.strip()
            if not ln or ln.startswith(";"): continue
            op = ln.split()[0]
            assert not op.startswith(("buffer_", "global_", "ds_")), ln
            self.append(Item("label" if ln.endswith(":") else "ins", ln))
        return self
    def VM(self, text, tag=None, opt=False):
        self.append(Item("vm", text.strip(), tag, opt)); return self
    def DS(self, text, tag=None, opt=False):
        self.append(Item("ds", text.strip(), tag, opt)); return self
    def WV(self, tag): self.append(Item("wv", tag=tag)); return self
    def WL(self, tag): self.append(Item("wl", tag=tag)); return self
    def WV0(self): self.append(Item("wv0")); return self
    def WL0(self): self.append(Item("wl0")); return self
    def RESETVM(self): self.append(Item("rvm")); return self
    def SKIP(self, n): self.append(Item("skip", tag=n)); return self
    def C(self, text): self.append(Item("cmt", text)); return self
    def G(self, items):
        self.append(Item("group", tag=list(items))); return self

def flat(s):
    out = []
    for it in s:
        if it.kind == "group": out += flat(it.tag)
        else: out.append(it)
    return out

def sprinkle(main, extra, start=0, end=None):
    main = list(main); extra = list(extra)
    if end is None: end = len(main)
    n = len(extra)
    out = S()
    pos = [start + (i * (end - start)) // max(n, 1) for i in range(n)]
    k = 0
    for i, it in enumerate(main):
        while k < n and pos[k] <= i:
            out.append(extra[k]); k += 1
        out.append(it)
    while k < n:
        out.append(extra[k]); k += 1
    return out

def resolve(stream):
    vm, ds = [], []
    out = []
    def emit_wait(kind, n):
        txt = f"{kind}({n})"
        if out and out[-1].startswith("s_waitcnt ") and kind not in out[-1]:
            out[-1] += " " + txt
        else:
            out.append("s_waitcnt " + txt)
    seen_vm, seen_ds = set(), set()
    for it in flat(stream):
        k = it.kind
        if k in ("ins", "label"): out.append(it.text)
        elif k == "cmt": out.append("; " + it.text)
        elif k == "vm":
            out.append(it.text); vm.append((it.tag, it.opt)); seen_vm.add(it.tag)
        elif k == "ds":
            out.append(it.text); ds.append((it.tag, it.opt)); seen_ds.add(it.tag)
        elif k in ("wv", "wl"):
            lst, mx, nm, seen = (vm, 63, "vmcnt", seen_vm) if k == "wv" else (ds, 15, "lgkmcnt", seen_ds)
            assert it.tag in seen, f"wait for unknown tag {it.tag}"
            idx = [i for i, (t, _) in enumerate(lst) if t == it.tag]
            if not idx: continue
            last = idx[-1]
            n = sum(1 for (t, o) in lst[last + 1:] if not o)
            emit_wait(nm, min(n, mx))
            del lst[:last + 1]
        elif k == "wv0": emit_wait("vmcnt", 0); vm.clear()
        elif k == "wl0": emit_wait("lgkmcnt", 0); ds.clear()
        elif k == "skip": pass
        elif k == "rvm": vm.clear()
        elif k == "done":
            idx = [i for i, (t, _) in enumerate(vm) if t == it.tag]
            del vm[:idx[-1] + 1]
        else: raise ValueError(k)
    return out

REG = re.compile(r"\b([vas])(?:(\d+)|\[(\d+):(\d+)\])")
def regs(opnd):
    out = set()
    for m in REG.finditer(opnd):
        t = m.group(1)
        if m.group(2) is not None: out.add((t, int(m.group(2))))
        else: out |= {(t, i) for i in range(int(m.group(3)), int(m.group(4)) + 1)}
    if re.search(r"\bvcc\b", opnd): out.add(("vcc", 0))
    if re.search(r"\bexec\b", opnd): out.add(("exec", 0))
    if re.search(r"\bm0\b", opnd): out.add(("m0", 0))
    return out
TRANS = ("v_exp_f32", "v_log_f32", "v_rcp_f32", "v_rsq_f32", "v_sqrt_f32", "v_sin_f32", "v_cos_f32")
def split_ops(ln):
    parts = ln.split(None, 1)
    op = parts[0]
    rest = parts[1] if len(parts) > 1 else ""
    ops = [o.strip() for o in re.split(r",(?![^\[]*\])", rest)]
    return op, ops
def classify(ln):
    op, ops = split_ops(ln)
    base = re.sub(r"_(e32|e64|dpp|sdwa)$", "", op)
    d = dict(op=base, w=set(), r=set(), cls="other", C=set(), AB=set(), dpp=("dpp" in op or "row_" in ln), sdata=set())
    if base.startswith("v_mfma"):
        d["cls"] = "mfma"; d["w"] = regs(ops[0]); d["AB"] = regs(ops[1]) | regs(ops[2]); d["C"] = regs(ops[3])
        d["r"] = d["AB"] | d["C"]; d["passes"] = 8 if "32x32" in base else 4
    elif base.startswith("v_"):
        d["cls"] = "valu"
        d["w"] = regs(ops[0]); d["r"] = set().union(*[regs(o) for o in ops[1:]]) if len(ops) > 1 else set()
        if base.startswith(("v_add_co", "v_sub_co", "v_addc_co")): d["w"] |= regs(ops[1])
        if base.startswith(("v_fmac", "v_permlane", "v_writelane", "v_dot2c")): d["r"] |= regs(ops[0])
        if base.startswith("v_permlane"): d["w"] |= regs(ops[1])
        if base.startswith("v_cmpx"): d["w"].add(("exec", 0))
    elif base.startswith(("buffer_", "global_")):
        d["cls"] = "vmem"
        islds = bool(re.search(r"\blds\b", ln)) or "_lds_" in base
        if "load" in base and not islds:
            d["w"] = regs(ops[0]); d["r"] = set().union(*[regs(o) for o in ops[1:]])
        else:
            d["r"] = set().union(*[regs(o) for o in ops])
            if "store" in base and ("x3" in base or "x4" in base):
                d["sdata"] = regs(ops[0] if base.startswith("buffer") else ops[1])
        if islds: d["r"].add(("m0", 0))
    elif base.startswith("ds_"):
        d["cls"] = "ds"
        if "read" in base or "permute" in base or "swizzle" in base:
            d["w"] = regs(ops[0]); d["r"] = set().union(*[regs(o) for o in ops[1:]])
        else:
            d["r"] = set().union(*[regs(o) for o in ops])
        if "addtid" in base: d["r"].add(("m0", 0))
    elif base.startswith("s_"):
        d["cls"] = "salu"
        if base in ("s_nop", "s_waitcnt", "s_barrier", "s_branch", "s_sleep", "s_endpgm", "s_setprio") or base.startswith(("s_cbranch", "s_cmp")):
            d["r"] = set().union(*[regs(o) for o in ops]) if ops else set()
        else:
            d["w"] = regs(ops[0]); d["r"] = set().union(*[regs(o) for o in ops[1:]]) if len(ops) > 1 else set()
            if "saveexec" in base: d["w"].add(("exec", 0))
    return d

def need(p, c):
    n = 0
    vw = {r for r in p["w"] if r[0] in "va" and r[0] != "vcc"}
    vw = {r for r in p["w"] if r[0] in ("v", "a")}
    sw = {r for r in p["w"] if r[0] in ("s", "vcc")}
    if p["cls"] == "valu":
        if c["cls"] == "mfma" and vw & c["r"]: n = max(n, 2)
        if c["cls"] == "valu":
            if p["op"] in TRANS and c["op"] not in TRANS and vw & c["r"]: n = max(n, 1)
            if c["dpp"] and vw & c["r"]: n = max(n, 2)
            if c["op"].startswith("v_permlane") and vw & c["r"]: n = max(n, 2)
            if c["op"].startswith(("v_readlane", "v_readfirstlane")) and vw & c["r"]: n = max(n, 1)
            if sw & c["r"]: n = max(n, 2)
            if ("exec", 0) in p["w"] and (c["dpp"]): n = max(n, 5)
        if p["op"] in TRANS and c["cls"] in ("vmem", "ds") and vw & c["r"]: n = max(n, 1)
        if c["cls"] == "vmem" and sw & c["r"]: n = max(n, 5)
        if c["cls"] == "salu" and sw & c["r"]: n = max(n, 1)
    if p["cls"] == "salu" and ("m0", 0) in p["w"] and c["cls"] in ("vmem", "ds") and ("m0", 0) in c["r"]: n = max(n, 1)
    if p["cls"] == "mfma":
        big = 12 if p["passes"] == 8 else 8
        if c["cls"] == "mfma":
            if p["w"] & c["AB"]: n = max(n, big)
            if p["w"] & c["C"] and not (p["w"] == c["C"] and p["passes"] == c["passes"]): n = max(n, big - 2)
            if p["w"] & c["w"] and not (p["w"] == c["C"]): n = max(n, big)
        elif c["cls"] in ("valu", "vmem", "ds"):
            if p["w"] & (c["r"] | c["w"]): n = max(n, big)
            if c["cls"] == "valu" and p["C"] & c["w"]: n = max(n, 7 if p["passes"] == 8 else 3)
    if p["cls"] == "vmem" and p["sdata"] and c["cls"] in ("valu", "mfma") and p["sdata"] & c["w"]: n = max(n, 2)
    return n

def fix_hazards(lines, verbose=False):
    out = []; hist = []
    nins = 0
    for ln in lines:
        if ln.startswith(";") or ln.endswith(":") or ln.startswith("."):
            out.append(ln); continue
        c = classify(ln)
        dist = 0; req = 0
        for p, st in reversed(hist):
            r = need(p, c) - dist
            if r > req: req = r
            dist += st
            if dist >= 20: break
        if req > 0:
            out.append(f"s_nop {req-1}"); hist.append((classify("s_nop 0"), req)); nins += 1
            if verbose: print("hazard pad", req, "before", ln)
        st = 1
        if c["op"] == "s_nop": st = int(ln.split()[1]) + 1
        out.append(ln); hist.append((c, st))
        if len(hist) > 40: hist = hist[-30:]
    return out, nins


def is_valu(it): return it.kind == "ins" and it.text.startswith("v_")
def is_mem(it): return it.kind in ("ds", "vm")
def cost(it):
    if it.kind == "group":
        fl = flat([it]); c = sum(cost(x) for x in fl)
        return c + 8 * sum(1 for x, y in zip(fl, fl[1:]) if is_valu(x) and is_mem(y))
    if it.kind in ("cmt", "label", "rvm", "done", "skip"): return 0
    if it.kind == "ins":
        op = it.text.split()[0]
        if op in TRANS: return 8
        if op.startswith("v_"): return 4
        return 3
    if it.kind == "ds" and "write" in it.text:
        if "addtid" in it.text: return 7
        if "b128" in it.text: return 22
        if "b64" in it.text: return 13
        return 10
    if is_mem(it): return 6
    return 3

def prepost(m):
    its = flat([m]); k = [i for i, x in enumerate(its) if x.kind == "ins" and x.text.startswith("v_mfma")][0]
    pre = its[:k]; nw = sum(1 for x in pre if x.kind in ("wv", "wl"))
    return sum(cost(x) for x in pre) - 3 * max(0, nw - 1), sum(cost(x) for x in its[k+1:])

def fill(mf, sides, cap):
    st = [dict(items=list(b), pace=p, k=0, nxt=a) for a, b, p in sides]
    out = S()
    pp = [prepost(m) for m in mf] + [(0, 0)]
    capf = cap if callable(cap) else None
    caps = cap if isinstance(cap, tuple) else (cap,)
    for g, m in enumerate(mf):
        out.append(m)
        cap = capf(g) if capf else caps[g % len(caps)]
        full = cap - pp[g][1] - pp[g+1][0]
        left = full
        seen_valu = False
        for phase in (0, 1):
            progress = True
            while left > 0 and progress:
                progress = False
                for s in st:
                    if s["k"] < len(s["items"]) and g >= s["nxt"] and left > 0:
                        it = s["items"][s["k"]]; c = cost(it); fl = flat([it])
                        hasv = any(is_valu(x) for x in fl); hasm = any(is_mem(x) for x in fl)
                        if phase == 0 and hasv: continue
                        if seen_valu and hasm: continue
                        if c > left and not (c > cap - pp[g][1] and left == full): continue
                        out.append(it); left -= c; s["k"] += 1
                        seen_valu |= hasv
                        if isinstance(s["pace"], list): s["nxt"] = s["pace"][s["k"]] if s["k"] < len(s["items"]) else 0
                        else: s["nxt"] += s["pace"]
                        if it.kind == "skip": s["nxt"] = max(s["nxt"], g + it.tag)
                        progress = True
    rests = [S(s["items"][s["k"]:]) for s in st]
    return out, rests

import subprocess, tempfile, os
def sizes(lines):
    src = '.amdgcn_target "amdgcn-amd-amdhsa--gfx950"\n.text\n' + "\n".join(lines) + "\n"
    with tempfile.TemporaryDirectory() as td:
        p = os.path.join(td, "a.s"); open(p, "w").write(src)
        r = subprocess.run(["llvm-mc", "-triple", "amdgcn-amd-amdhsa", "-mcpu=gfx950", "-show-encoding", p], capture_output=True, text=True)
        assert r.returncode == 0, r.stderr[:3000]
    sz = [len(m.group(1).split(",")) for m in re.finditer(r"; encoding: \[(.*?)\]", r.stdout)]
    return sz
def align8(lines):
    idx = [i for i, l in enumerate(lines) if not (l.startswith(";") or l.endswith(":") or l.startswith("."))]
    sz = sizes(lines)
    assert len(sz) == len(idx), (len(sz), len(idx))
    lines = list(lines); off = 0; cand = None; n = 0
    for i, z in zip(idx, sz):
        op = lines[i].split()[0]
        if z >= 8:
            if off % 8 == 4 and cand is not None:
                p = lines[cand].split(None, 1); lines[cand] = p[0] + "_e64 " + p[1]; off += 4; n += 1
            cand = None
        else:
            ok = op.startswith("v_") and not op.startswith(("v_readfirstlane", "v_permlane", "v_accvgpr", "v_nop")) and not op.endswith(("_e64", "_e32", "_dpp"))
            if ok: cand = i
        off += z
    return lines, n

def add_pads(lines, regions, stride, nw=4):
    idx = [i for i, l in enumerate(lines) if not (l.startswith(";") or l.endswith(":") or l.startswith("."))]
    sz = dict(zip(idx, sizes(lines)))
    pos = {}
    for name, a, b, nxt in regions:
        i0, i1 = lines.index(a + ":"), lines.index(b + ":")
        p = []; acc = stride
        for i in range(i0 + 1, i1):
            if i in sz:
                if acc >= stride and not lines[i-1].startswith("s_waitcnt"): p.append(i); acc = 4
                acc += sz[i]
        pos[name] = p
    ins = {}
    for name, a, b, nxt in regions:
        p = pos[name]
        for k, i in enumerate(p):
            if k + nw < len(p): tgt = f"L_pad_{name}_{k+nw}"
            elif nxt in pos: tgt = f"L_pad_{nxt}_{(k + nw - len(p))}"
            else: tgt = nxt
            ins[i] = [f"L_pad_{name}_{k}:", f"s_cbranch_execz {tgt}"]
    out = []
    for i, l in enumerate(lines):
        out += ins.get(i, []); out.append(l)
    return out, {k: len(x) for k, x in pos.items()}

def paced(stream, start, pace):
    pos = float(start); starts = []
    for it in stream:
        if any(x.kind == "vm" for x in flat([it])): starts.append(int(pos)); pos += pace
        else: starts.append(max(int(pos) - 1, start))
    return (starts[0] if starts else 0, stream, starts), int(pos)
```

```python
import sys, struct, math
sys.path.insert(0, "dev")
from gl import *

NAME = "recurrent_scan__ssm_conv_s4__dense_activation_gelu__prompt"
def f2u(x): return struct.unpack("<I", struct.pack("<f", x))[0]
def hx(x): return f"0x{x & 0xffffffff:08x}"

WS_F1 = 0x1000
WS_F1ALL = 0x9000
WS_F2 = 0xA000
WS_F3 = 0x28000
WS_STAMP = 0x40000
WS_FX = 0x80000
WS_XF = 0x100000
WS_G = 0x380000
WS_W2F = 0x600000
WS_ST = 0x840000
WS_HF = 0xAC0000
WS_SIZE = 0x1200000
TROW = 544; TCH = 63 * TROW
L_TBL = 0; TBM = 0
L_LNI = 144896; LNS = 1344
L_W2S = 155648; L_W2S2 = 131072
L_RST = 122880; RSTS = 4112
KS = 4160; KCH = 4 * KS; UB = 4640; UCH = 2 * UB
L_K = 33792; L_U = 102912
DK_ = (35840, 0); DU_ = (0, 28288)
L_PART = 0; PR_ = 264; PW_ = 32 * PR_
L_PB = 33792
PBN = 1040; PBW = 5 * PBN; PBS = 4 * PBW
L_ST = 86016
LDS_BYTES = 163840
sX, sARE, sAIM, sBRE, sBIM, sCRE, sCIM, sLDT = [f"s[{i}:{i+1}]" for i in range(4, 20, 2)]
sDSK = "s[20:21]"; sB2 = "s[30:31]"
RWS = "s[40:43]"; RW1 = "s[44:47]"; RW2 = "s[48:51]"; RB1 = "s[52:55]"; RX = "s[56:59]"; ROUT = "s[60:63]"
sW, sXCD, sSLOT, sRB, sCT, sPAIR = "s64", "s65", "s66", "s67", "s68", "s69"
sTOK = "s[70:71]"
sW1C, sMT, sMK, sRB64, sCT2 = "s72", "s73", "s74", "s75", "s76"
sT0, sT1, sT2, sT3, sSPIN = "s77", "s78", "s79", "s80", "s81"
GX = 82
sHS, sF2O, sOOB, sL = "s92", "s93", "s94", "s95"
sW12 = "s96"
LOG2E = 1.4426950408889634
W1V = 4
W2PV, HV, HV2, SLD, XO, PRD, SRD_, SWR, B2A, F2A, F3A = 8, 10, 11, 12, 13, 14, 15, 16, 17, 18, 19
FD = 20; FT = 22
AD, RSW2, AQ, RSW, RSR, DK = 24, 26, 28, 29, 30, 31
XNV, TR, B1V, F1A = 32, 33, 37, 38
UAD, UW, PADU, PADK, VA, VB, FINR, HSV, FALL = 39, 40, 41, 42, 43, 44, 45, 46, 47
PR = 48; K0, K1, ONE, ZERO = 56, 58, 60, 62
KEEP = 208; U = 240; TB = 176

class Cfg:
    stamps = False
    g2map = "8x4"
    spin = 1 << 20
    nt1 = False
    ntw1 = 0
    only = None
    hsplit = 5
    upos = 146
    upace = 8
    f3gap = 70
    sgap = 225
    nh0 = 10
    early = 0
    dm0 = 0
    nlate = 10
    g2pace = 3.9
    b2dl = 75
    xdl = 150
    mid = 2
    scvend = 90
    nbub = 6
    sfx = 170
    spre = 6
    sf1 = 50
    sf3 = 100
    scap = 13
    f1early = True
    ccap = 9
    g1cap = 25
    glate = False
    gbar = 18
    gdl = 0
    fxpos = 0.7
    npre = 8
    nkg = 10
    need = ((18, 7), (30, 9))
    dmlead = 0
    fabar = 18
    hop = 0
    g2cap = 12
    g2cap0 = 10
    f2gap = -1
    f2pos = 0
    cvend = 90
    cvchk = 110
    pf = True
    nup = 10
    xpace = 2.1
    wpace = 2.6
    ngelu = 16
    wsoff = 0
    align = True
    verbose = False
    exp = ''
    probe = None

def v(i, n=1): return f"v{i}" if n == 1 else f"v[{i}:{i+n-1}]"
def a(i, n=1): return f"a{i}" if n == 1 else f"a[{i}:{i+n-1}]"
def grp(s): return S().G(s)
def regroup(s):
    o = S(); cur = None
    for it in s:
        t = it.text or ""
        if cur is None and it.kind == "ins" and t.startswith("s_cmp"): cur = S()
        if cur is not None:
            cur.append(it)
            if t.startswith("s_cselect"): o.G(cur); cur = None
        else: o.append(it)
    assert cur is None
    return o
def XRf(mb): return 32 + 4*mb if mb < 2 else 56 + 4*(mb-2)

class Gen:
    def __init__(self, cfg):
        self.c = cfg; self.nl = 0; self.stamps = {}
    def lab(self, b):
        self.nl += 1; return f"L_{b}_{self.nl}"
    def stamp(self, s, name):
        if self.c.probe == name:
            s.G(S().I("s_memrealtime s[38:39]\ns_waitcnt lgkmcnt(0)\ns_sub_u32 s97, s38, s98"))
        if self.c.stamps and (self.c.only is None or name in self.c.only.split('+') or name == 'end'):
            i = self.stamps.setdefault(name, len(self.stamps))
            assert i < 60
            g = S(); g.I(f"s_memtime s[38:39]\ns_waitcnt lgkmcnt(0)\ns_sub_u32 s38, s38, s100\nv_writelane_b32 v3, s38, {i}")
            s.G(g)

    def flag_addr(self, s, vaddr, base, n):
        s.I(f"v_min_u32 {v(vaddr)}, {n-1}, v1\nv_lshl_add_u32 {v(vaddr)}, {v(vaddr)}, 7, {base}")
    def flag_issue(self, s, vaddr, tag, opt=False):
        s.VM(f"buffer_load_dwordx2 {v(FD,2)}, {v(vaddr)}, {RWS}, 0 offen sc1", tag, opt)
    def flag_check(self, s, vaddr, tag, sleep=2):
        ok, lp = self.lab("ok"), self.lab("poll")
        g = S()
        g.WV(tag)
        g.I(f"v_cmp_ne_u64 vcc, {sTOK}, {v(FD,2)}\ns_cbranch_vccnz {lp}\n{ok}:")
        s.G(g)
        o = self.ool
        o += [f"{lp}:", f"s_mov_b32 {sSPIN}, 0", f"{lp}_l:", f"s_sleep {sleep}",
              f"buffer_load_dwordx2 {v(FD,2)}, {v(vaddr)}, {RWS}, 0 offen sc1",
              f"s_add_u32 {sSPIN}, {sSPIN}, 1", "s_waitcnt vmcnt(0)", f"v_cmp_ne_u64 vcc, {sTOK}, {v(FD,2)}",
              f"s_cbranch_vccz {ok}", f"s_cmp_lt_u32 {sSPIN}, {self.c.spin}", f"s_cbranch_scc1 {lp}_l", f"s_branch {ok}"]
    def f1_issue(self, s, T, tag):
        s.VM(f"buffer_load_dwordx4 {v(T,4)}, {v(FALL)}, {RWS}, 0 offen sc1", tag)
        s.VM(f"buffer_load_dwordx4 {v(T+4,4)}, {v(FALL)}, {RWS}, 0 offen offset:1024 sc1", tag)
    def f1_check(self, s, T, tag):
        ok, lp = self.lab("ok"), self.lab("poll")
        cmp_ = [f"v_cmp_ne_u64 vcc, {sTOK}, {v(T,2)}", f"v_cmp_ne_u64 s[38:39], {sTOK}, {v(T+2,2)}", f"v_cmp_ne_u64 s[24:25], {sTOK}, {v(T+4,2)}",
                f"v_cmp_ne_u64 s[26:27], {sTOK}, {v(T+6,2)}", "s_or_b64 vcc, vcc, s[38:39]", "s_or_b64 s[24:25], s[24:25], s[26:27]", "s_or_b64 vcc, vcc, s[24:25]"]
        g = S(); g.WV(tag); g.I("\n".join(cmp_) + f"\ns_cbranch_scc1 {lp}\n{ok}:")
        s.G(g)
        self.ool += [f"{lp}:", f"s_mov_b32 {sSPIN}, 0", f"{lp}_l:", "s_sleep 8",
              f"buffer_load_dwordx4 {v(T,4)}, {v(FALL)}, {RWS}, 0 offen sc1", f"buffer_load_dwordx4 {v(T+4,4)}, {v(FALL)}, {RWS}, 0 offen offset:1024 sc1",
              f"s_add_u32 {sSPIN}, {sSPIN}, 1", "s_waitcnt vmcnt(0)"] + cmp_ + [
              f"s_cbranch_scc0 {ok}", f"s_cmp_lt_u32 {sSPIN}, {self.c.spin}", f"s_cbranch_scc1 {lp}_l", f"s_branch {ok}"]
    def flag_set(self, s, soff, only_wave0):
        sk = self.lab("fs")
        g = S()
        if only_wave0: g.I(f"s_cmp_lg_u32 {sW}, 0\ns_cbranch_scc1 {sk}")
        g.I("s_mov_b64 exec, 1")
        g.VM(f"buffer_store_dwordx2 {v(FT,2)}, v2, {RWS}, {soff} offen sc1", opt=True)
        g.I("s_mov_b64 exec, -1")
        if only_wave0: g.I(f"{sk}:")
        s.G(g)

    LG = tuple(range(10))
    def w1_dma(self, g_, restore=None):
        nt = " nt" if g_ < self.c.ntw1 else ""
        g = S()
        g.I(f"s_add_u32 m0, {sW12}, {self.LG[g_]*16384}\ns_mul_i32 {sT0}, s{GX+g_}, 54\ns_add_u32 {sT0}, {sT0}, {sW1C}")
        for i in range(4):
            g.VM(f"buffer_load_dwordx4 {v(W1V+i)}, {RW1}, {sT0} offen offset:{1024*i}{nt} lds", f"w1_{g_}")
        if restore: g.I(f"s_mov_b32 m0, {restore}")
        return grp(g)
    def w1_seq(self, groups, restore=None):
        o = S()
        for g_ in groups:
            for i in range(4):
                g = S()
                if i == 0: o.G(S().I(f"s_mul_i32 s33, s{GX+g_}, 54\ns_add_u32 s33, s33, {sW1C}"))
                if i == 0 or restore: g.I(f"s_add_u32 m0, {sW12}, {self.LG[g_]*16384}")
                if i == 0 and not restore: o.G(g); g = S()
                g.VM(f"buffer_load_dwordx4 {v(W1V+i)}, {RW1}, s33 offen offset:{1024*i} lds", f"w1_{g_}")
                if restore: g.I(f"s_mov_b32 m0, {restore}")
                o.G(g)
        return o
    def xn_load(self, st):
        return S().VM(f"buffer_load_dwordx4 {a(4*st,4)}, {v(XNV)}, {RWS}, s{GX+st//4} offen offset:{1024*(st%4)} sc1", f"xn_{st}")
    def w2reg(self, q):
        if q < 24: return a(160 + 4*q, 4)
        if q < 30: return v(232 + 4*(q-24), 4)
        return a(4*(q-30), 4)
    QORD = list(range(0, 24)) + list(range(30, 60)) + list(range(24, 30)) + list(range(60, 70))
    def w2p_loads(self, i0, i1, nat=False):
        s = S(); last = None
        for q in (range(i0, i1) if nat else self.QORD[i0:i1]):
            st, nb = divmod(q, 5)
            if st != last: s.I(f"s_mov_b32 s25, {st*40960}"); last = st
            if q == 60: s.G(S().I(f"v_or_b32 {v(W2PV)}, {sOOB}, {v(W2PV)}\nv_or_b32 {v(W2PV+1)}, {sOOB}, {v(W2PV+1)}"))
            srd = RB1 if ('half' in self.c.exp and q % 2 == 1) or 'now2' in self.c.exp else RWS
            s.VM(f"buffer_load_dwordx4 {self.w2reg(q)}, {v(W2PV + nb//4)}, {srd}, s25 offen offset:{1024*(nb%4)} sc1", f"w2p_{q}")
        return s
    def param_loads(self, s, base, vaddr, vaddr2, tag):
        nt = " nt" if self.c.nt1 else ""
        for i, p in enumerate((sARE, sAIM, sBRE, sBIM, sCRE, sCIM)):
            s.VM(f"global_load_short_d16_hi {v(base+i)}, {v(vaddr)}, {p}{nt}", tag)
        s.VM(f"global_load_short_d16_hi {v(base+6)}, {v(vaddr2)}, {sLDT}", tag)
        s.VM(f"global_load_short_d16_hi {v(base+7)}, {v(vaddr2)}, {sDSK}", tag)
    def u_loads(self, s, dst0, dst1, tag, off=0):
        s.I(f"s_mov_b32 {sT0}, {32*10240}")
        s.VM(f"buffer_load_dwordx4 {dst0}, {v(UAD)}, {RWS}, 0 offen offset:{off} sc1", tag)
        s.VM(f"buffer_load_dwordx4 {dst1}, {v(UAD)}, {RWS}, {sT0} offen offset:{off} sc1", tag)

    def w2unit_dma(self, s, sunit, ldsbase, va, tag):
        nt = " nt" if self.c.nt1 else ""
        s.I(f"""s_mul_i32 {sT0}, {sunit}, 52429
        s_lshr_b32 {sT0}, {sT0}, 18
        s_mul_i32 {sT1}, {sT0}, {32*1280 - 5*256}
        s_lshl_b32 {sT0}, {sunit}, 8
        s_add_u32 {sT0}, {sT0}, {sT1}
        s_lshl_b32 {sT2}, {sW}, 11
        s_add_u32 m0, {sT2}, {ldsbase}
        s_mul_i32 {sT1}, {sW}, {8*1280}
        s_add_u32 {sT0}, {sT0}, {sT1}""")
        s.VM(f"buffer_load_dwordx4 {v(va)}, {RW2}, {sT0} offen{nt} lds", tag)
        s.VM(f"buffer_load_dwordx4 {v(va+1)}, {RW2}, {sT0} offen offset:1024{nt} lds", tag)
    def w2unit_rd(self, s, va, vd, extra=0):
        for b in range(2):
            for hh in range(2):
                s.DS(f"ds_read_b64_tr_b16 {v(vd+4*b+2*hh,2)}, {v(va+b)} offset:{hh*2048+extra}", "w2u")
    def w2unit_st(self, s, sunit, vd):
        s.I(f"s_lshl_b32 {sT0}, {sunit}, 13\ns_lshl_b32 {sT1}, {sW}, 11\ns_add_u32 {sT0}, {sT0}, {sT1}\ns_add_u32 {sT0}, {sT0}, {WS_W2F}")
        s.WL("w2u")
        s.VM(f"buffer_store_dwordx4 {v(vd,4)}, v2, {RWS}, {sT0} offen sc1", "p1st")
        s.VM(f"buffer_store_dwordx4 {v(vd+4,4)}, v2, {RWS}, {sT0} offen offset:1024 sc1", "p1st")

    def cmul(self, s, r, x, y, t):
        s.I(f"v_pk_mul_f32 {v(t,2)}, {v(x,2)}, {v(y,2)} op_sel:[0,0] op_sel_hi:[1,0]")
        s.I(f"v_pk_fma_f32 {v(r,2)}, {v(x,2)}, {v(y,2)}, {v(t,2)} op_sel:[1,1,0] op_sel_hi:[0,1,1] neg_lo:[1,0,0]")

    def kgen_chains(self, P, tag, keep=None):
        s = S(); T = 96
        Are, Aim, Bre, Cre, ldt = P, P+1, P+2, P+4, P+6
        dt, a2, bq, t0, t1 = T, T+1, T+2, T+3, T+4
        z1, z16, w, tmp, q, odd = T+6, T+8, T+10, T+12, T+14, T+16
        E = T + 18
        pk0 = T + 36
        s.WV(tag)
        s.I(f"""v_mul_f32 {v(dt)}, {hx(f2u(LOG2E))}, {v(ldt)}
        v_exp_f32 {v(dt)}, {v(dt)}
        v_cmp_eq_u32 vcc, 48, {v(DK)}
        v_cvt_pk_bf16_f32 {v(dt)}, {v(dt)}, {v(dt)}
        v_lshlrev_b32 {v(dt)}, 16, {v(dt)}
        v_cndmask_b32 {v(P+7)}, 0, {v(P+7)}, vcc
        v_mul_f32 {v(a2)}, {v(dt)}, {v(Are)}
        v_mul_f32 {v(bq)}, {v(dt)}, {v(Aim)}
        v_mul_f32 {v(a2)}, {hx(f2u(LOG2E))}, {v(a2)}
        v_mul_f32 {v(bq)}, 0.15915494, {v(bq)}""")
        for z, e in ((z1, 1.0), (z16, 16.0), (w, 256.0)):
            if e == 1.0:
                s.I(f"v_exp_f32 {v(t0)}, {v(a2)}\nv_fract_f32 {v(t1)}, {v(bq)}")
            else:
                s.I(f"""v_mul_f32 {v(t0)}, {hx(f2u(e))}, {v(a2)}
                v_mul_f32 {v(t1)}, {hx(f2u(e))}, {v(bq)}
                v_exp_f32 {v(t0)}, {v(t0)}
                v_fract_f32 {v(t1)}, {v(t1)}""")
            s.I(f"""v_cos_f32 {v(z)}, {v(t1)}
            v_sin_f32 {v(z+1)}, {v(t1)}
            v_mul_f32 {v(z)}, {v(t0)}, {v(z)}
            v_mul_f32 {v(z+1)}, {v(t0)}, {v(z+1)}""")
        self.cmul(s, E, Bre, Cre, tmp)
        s.I(f"v_pk_mul_f32 {v(E,2)}, {v(E,2)}, {v(dt,2)} op_sel_hi:[1,0]")
        pend = []
        def flush():
            g = S()
            if cnt[0] == 16: g.I(f"s_mov_b32 m0, {sMT}")
            for row, pk in pend: g.DS(f"ds_write_addtid_b32 {v(pk)} offset:{L_TBL-TBM+row*TROW}", "tbl")
            s.G(g); pend.clear()
        cnt = [0]
        def put(row, r, isP):
            pk = pk0 + (cnt[0] % 16); cnt[0] += 1
            if keep is not None: pk = keep + row
            if r is None: s.I(f"v_mov_b32 {v(pk)}, 0x3f80")
            else: s.I(f"v_cvt_pk_bf16_f32 {v(pk)}, {v(r)}, {'-' if isP else ''}{v(r+1)}")
            if keep is None: pend.append((row, pk))
            if len(pend) == (16 if cnt[0] == 16 or cnt[0] < 16 else 8): flush()
        put(0, E, True); put(47, None, False); put(48, z16, False)
        for i in range(1, 17):
            src = E + (i-1) if (i-1) % 2 == 0 else odd
            dst = E + i if i % 2 == 0 else odd
            self.cmul(s, dst, src, z1, tmp)
            if i <= 15: put(i, dst, True)
            if 2 <= i <= 15:
                self.cmul(s, q, z16 if i == 2 else q, z16, tmp)
                put(47 + i, q, False)
        row = 16
        for t in range(1, 8):
            step = 2 if t == 1 else (4 if t <= 3 else 8)
            for i in range(0, 17, step):
                self.cmul(s, E + i, E + i, w, tmp)
                put(row, E + i, True); row += 1
        assert row == 47
        if pend: flush()
        return s

    def kgen_reads(self, FR):
        self.nl += 1; uid = self.nl; r = S()
        for ks in range(8):
            r.DS(f"ds_read_b128 {FR[3*ks]}, {v(AQ)} offset:{ks*64}", f"kf{uid}_{ks}")
            for b in range(2):
                r.DS(f"ds_read_b128 {FR[3*ks+1+b]}, {v(AD+b)} offset:{ks*64}", f"kf{uid}_{ks}")
        return r, uid
    def kgen_mfma(self, P, FR, uid, side=(), f2=()):
        s = S(); acc = 64; side = list(side)
        for ks in range(8):
            for b in range(2):
                if b == 0: s.WL(f"kf{uid}_{ks}")
                c = "0" if ks == 0 else v(acc+4*b, 4)
                s.I(f"v_mfma_f32_16x16x32_bf16 {v(acc+4*b,4)}, {FR[3*ks+1+b]}, {FR[3*ks]}, {c}")
                if side: s.append(side.pop(0))
        s += side
        h1, jn = self.lab("kh"), self.lab("kj")
        s.I(f"s_bitcmp1_b32 {sW}, 0\ns_cbranch_scc1 {h1}\ns_nop 5\nv_add_f32 {v(acc+3)}, {v(acc+3)}, {v(P+7)}")
        for b in range(2):
            s.I(f"v_cvt_pk_bf16_f32 {v(72+2*b)}, {v(acc+4*b)}, {v(acc+4*b+1)}\nv_cvt_pk_bf16_f32 {v(73+2*b)}, {v(acc+4*b+2)}, {v(acc+4*b+3)}")
        for b in range(2):
            s.DS(f"ds_write_b64 {v(RSW)}, {v(72+2*b,2)} offset:{(1-b)*512}", "rst")
        s.I(f"s_branch {jn}\n{h1}:\ns_nop 5")
        for i, (x, y) in enumerate(((2,2),(1,1),(1,0),(0,0))):
            s.I(f"v_cvt_pk_bf16_f32 {v(72+i)}, {v(acc+x)}, {v(acc+y)}")
        for i, (x, y) in enumerate(((2,2),(2,2),(1,1),(1,1),(1,1),(1,0),(0,0),(0,0))):
            s.I(f"v_cvt_pk_bf16_f32 {v(76+i)}, {v(acc+4+x)}, {v(acc+4+y)}")
        s.DS(f"ds_write_b128 {v(RSW)}, {v(72,4)}", "rst")
        s.DS(f"ds_write_b128 {v(RSW2)}, {v(76,4)}", "rst")
        s.DS(f"ds_write_b128 {v(RSW2)}, {v(80,4)} offset:16", "rst")
        s.I(f"{jn}:")
        s += f2
        s.WL0()
        return s
    def kgen_post(self, D, O):
        s = S()
        s.I(f"v_add_u32 v88, 4, {v(RSR)}")
        for i in range(0, 8, 2):
            s.DS(f"ds_read2st64_b32 {v(D+i,2)}, {v(RSR)} offset0:{i} offset1:{i+1}", "keep")
        for i in range(0, 8, 2):
            s.DS(f"ds_read2st64_b32 {v(O+i,2)}, v88 offset0:{i} offset1:{i+1}", "keep")
        t = S(); t.WL("keep")
        for i in range(8): t.I(f"v_alignbit_b32 {v(O+i)}, {v(O+i)}, {v(D+i)}, 16")
        return s, t

    def prep_k(self, K, ar=0):
        s = S()
        s.I(f"s_mov_b32 m0, {sMK}")
        for cp in range(4):
            for i in range(8):
                s.DS(f"ds_write_addtid_b32 {v(K + 8*(cp%2) + i)} offset:{DK_[ar] + cp*KS - 4*(cp//2) + 256*i}", "cp")
        return s
    def prep_u(self, R, utag, ar=0, pads=True):
        s = S()
        if pads:
            s.DS(f"ds_write_b32 {v(PADK)}, {v(ZERO)} offset:{DK_[ar]}", "cp")
            s.DS(f"ds_write_b64 {v(PADU)}, {v(ZERO,2)} offset:{DU_[ar]}", "cp")
        s.WV(utag)
        for i in range(2):
            s.DS(f"ds_write_b128 {v(UW)}, {R(4*i,4)} offset:{DU_[ar]+464+512*i}", "cp")
            s.DS(f"ds_write_b64 {v(UW)}, {R(4*i,2)} offset:{DU_[ar]+UB+472+512*i}", "cp")
            s.DS(f"ds_write_b64 {v(UW)}, {R(4*i+2,2)} offset:{DU_[ar]+UB+480+512*i}", "cp")
        return s
    def conv_main(self, sides, nr=1, cap=2, ctl=None):
        ACC = 64; FR = 96; self.nl += 1; uid = self.nl
        def reads(rr):
            ar, rho = (rr // 4) % 2, rr % 4
            o = FR + 64 * (rho % 2); r = S()
            for i in range(8):
                r.DS(f"ds_read_b128 {v(o+4*i,4)}, {v(VA)} offset:{DK_[ar]+64*(3-rho)+512*(7-i)}", f"cA{uid}_{rr}_{i}")
                r.DS(f"ds_read_b128 {v(o+32+4*i,4)}, {v(VB)} offset:{DU_[ar]+64*(3-rho)+512*i}", f"cB{uid}_{rr}_{i}")
            return r
        cells = [(i, j) for i in range(8) for j in range(8) if i + j <= 7]
        order0 = sorted(cells, key=lambda p: (max(p), p[0]+p[1]))
        order3 = sorted(cells, key=lambda p: (p[0]+p[1], p[0]))
        mf = []; done_at = {}; first_at = {}
        for rr in range(4 * nr):
            rho = rr % 4
            o = FR + 64 * (rho % 2); have = -1
            for (i, j) in (order3 if rho == 3 else order0):
                g = S()
                need_ = max(i, j)
                if need_ > have:
                    if rr > 0: need_ = 3 if need_ <= 3 else 7
                    g.WL(f"cB{uid}_{rr}_{need_}"); have = need_
                c = i + j
                cin = v(ACC+4*c, 4)
                if (rr // 4, c) not in first_at: cin = "0"; first_at[rr // 4, c] = len(mf)
                g.I(f"v_mfma_f32_16x16x32_bf16 {v(ACC+4*c,4)}, {v(o+4*i,4)}, {v(o+32+4*j,4)}, {cin}")
                mf.append(Item("group", tag=list(g)))
                done_at[rr // 4, c] = len(mf) - 1
        r0 = reads(0)
        sd = [(0, r0[8:], 1), (10, reads(1), 1.5)] + [(36 * (rr - 1) + (1 if rr % 4 else 3), reads(rr), 2 if rr % 4 else 1.8) for rr in range(2, 4 * nr)]
        w = S(); st_ = []
        for r_ in range(nr):
            if ctl and ctl[r_]:
                for it in ctl[r_]: w.append(it); st_.append(144 * r_ + (4 if r_ == 0 else 0))
            w.I(f"s_mul_i32 m0, {sW}, {PW_}"); st_.append(144 * r_ + 108)
            for c in range(8):
                for r in range(4):
                    w.DS(f"ds_write_addtid_b32 {v(ACC+4*c+r)} offset:{L_PART+(4*c+r)*PR_}", f"cpart{r_}_{c}"); st_.append(done_at[r_, c] + 4)
        sd.append((st_[0], w, st_))
        caps = cap if isinstance(cap, tuple) else (cap,)
        capf = lambda g: 13 if (g % 144 >= 112 or (g >= 144 and g % 144 < 6)) else caps[g % len(caps)]
        body, rests = fill(mf, sd + list(sides), capf)
        out = S(r0[:8] + body + sum(rests, []))
        pos = {id(it): i for i, it in enumerate(out)}
        fl = flat(out); fpos = {id(it): i for i, it in enumerate(fl)}
        for r_ in range(1, nr):
            for c in range(8):
                lastw = max(i for i, it in enumerate(fl) if it.kind == "ds" and it.tag == f"cpart{r_-1}_{c}")
                assert lastw < fpos[id(flat([mf[first_at[r_, c]]])[-1])], (r_, c)
            lastc = fpos[id(flat(ctl[r_-1])[-1])]
            assert fl[lastc].text == "s_barrier"
            assert lastc < min(i for i, it in enumerate(fl) if it.kind == "ds" and it.tag == f"cA{uid}_{4*r_}_0"), r_
        return out
    def conv_fin(self, T0, T1, O, dp=0):
        s = S()
        def rds(rd):
            for src in range(2):
                for r in range(4):
                    s.DS(f"ds_read_b64 {v((T0,T1)[rd]+8*src+2*r,2)}, {v(FINR)} offset:{src*PW_+rd*8*PR_+(r>>1)*8+(r&1)*128}", f"cf{rd}")
        rds(0)
        if T0 != T1: rds(1)
        s.I(f"s_lshl_b32 s24, {sPAIR}, 2\ns_add_u32 s24, s24, {sW}\ns_lshl_b32 s24, s24, 11\ns_add_u32 s24, s24, {WS_ST + dp*8192}")
        for rd in range(2):
            if rd == 0 or T0 == T1: s.SKIP(5)
            s.WL(f"cf{rd}")
            b = (T0, T1)[rd]; o = O + 4*rd
            for i in range(8): s.I(f"v_add_f32 {v(b+i)}, {v(b+i)}, {v(b+8+i)}")
            s.I(f"""v_cvt_pk_bf16_f32 {v(o)}, {v(b)}, {v(b+2)}
            v_cvt_pk_bf16_f32 {v(o+1)}, {v(b+4)}, {v(b+6)}
            v_cvt_pk_bf16_f32 {v(o+2)}, {v(b+1)}, {v(b+3)}
            v_cvt_pk_bf16_f32 {v(o+3)}, {v(b+5)}, {v(b+7)}""")
            if rd == 0 and T0 == T1: rds(1)
            s.VM(f"buffer_store_dwordx4 {v(o,4)}, v2, {RWS}, s24 offen offset:{rd*1024} sc1", "sst")
        return s

    def addresses(self, tb=112, sfx=''):
        s = S(); t0, t1, t2, t3 = tb, tb+1, tb+2, tb+3
        sCH, sHB = sT2, sT3
        s.I(f"""s_lshr_b32 {sCH}, {sW}, 1
        s_and_b32 {sHB}, {sW}, 1
        s_mul_i32 {sMT}, {sCH}, {TCH}
        v_lshrrev_b32 {v(t0)}, 4, v1
        v_lshl_add_u32 {v(t2)}, {v(t0)}, 4, {sMT}
        s_lshl_b32 {sT0}, {sHB}, 8
        s_add_u32 {sMT}, {sMT}, {sT0}
        v_and_b32 {v(t1)}, 15, v1
        v_add_u32 {v(AQ)}, 47, {v(t1)}
        v_mul_u32_u24 {v(AQ)}, {TROW}, {v(AQ)}
        v_add_u32 {v(AQ)}, {v(AQ)}, {v(t2)}
        v_and_b32 {v(DK)}, 127, v0
        s_mul_i32 {sT0}, {sCH}, {RSTS}
        s_add_u32 {sT0}, {sT0}, {L_RST}
        s_lshl_b32 {sT1}, {sHB}, 11
        s_add_u32 {sL}, {sT0}, {sT1}
        v_lshl_add_u32 {v(RSR)}, v1, 2, {sL}
        v_lshlrev_b32 {v(RSW)}, 5, {v(t1)}
        v_sub_u32 {v(RSW)}, {sT0}, {v(RSW)}
        s_cmp_eq_u32 {sHB}, 0
        s_cbranch_scc0 L_adh1{sfx}
        v_sub_u32 {v(AD)}, 15, {v(t1)}
        v_bfe_u32 {v(t3)}, {v(AD)}, 1, 1
        v_add_u32 {v(AD+1)}, {v(AD)}, {v(t3)}
        v_lshrrev_b32 {v(AD+1)}, 1, {v(AD+1)}
        v_add_u32 {v(AD+1)}, 16, {v(AD+1)}
        v_lshl_add_u32 {v(RSW)}, {v(t0)}, 3, {v(RSW)}
        v_add_u32 {v(RSW)}, {4064-512}, {v(RSW)}
        s_branch L_adj{sfx}
        L_adh1{sfx}:
        v_and_b32 {v(t3)}, 3, v1
        v_min_u32 {v(t3)}, 2, {v(t3)}
        v_bfe_u32 {v(AD)}, v1, 2, 2
        v_mad_u32_u24 {v(AD+1)}, {v(AD)}, 3, {v(t3)}
        v_add_u32 {v(AD+1)}, 35, {v(AD+1)}
        v_mul_u32_u24 {v(AD)}, 5, {v(AD)}
        v_lshrrev_b32 {v(AD)}, 1, {v(AD)}
        v_add3_u32 {v(AD)}, {v(AD)}, {v(t3)}, 25
        v_lshlrev_b32 {v(t3)}, 9, {v(t0)}
        v_sub_u32 {v(RSW2)}, {v(RSW)}, {v(t3)}
        v_add_u32 {v(RSW2)}, {4064-2048}, {v(RSW2)}
        v_and_b32 {v(t3)}, 32, v1
        v_lshlrev_b32 {v(t3)}, 4, {v(t3)}
        v_sub_u32 {v(RSW)}, {v(RSW)}, {v(t3)}
        v_and_b32 {v(t3)}, 16, v1
        v_sub_u32 {v(RSW)}, {v(RSW)}, {v(t3)}
        v_add_u32 {v(RSW)}, {4080-1024}, {v(RSW)}
        L_adj{sfx}:
        v_mul_u32_u24 {v(AD)}, {TROW}, {v(AD)}
        v_mul_u32_u24 {v(AD+1)}, {TROW}, {v(AD+1)}
        v_add_u32 {v(AD)}, {v(AD)}, {v(t2)}
        v_add_u32 {v(AD+1)}, {v(AD+1)}, {v(t2)}
        """)
        adk = s; s = S()
        common = f"""s_lshr_b32 {sCH}, {sW}, 1
        s_and_b32 {sHB}, {sW}, 1
        v_lshrrev_b32 {v(t0)}, 4, v1
        v_and_b32 {v(t1)}, 15, v1
        s_lshl_b32 {sT1}, {sHB}, 11"""
        s.I(f"""
        s_mul_i32 {sL}, {sCH}, {KCH}
        s_add_u32 {sL}, {sL}, {L_K}
        s_add_u32 {sMK}, {sL}, {sT1}
        v_mul_u32_u24 {v(PADK)}, {KS}, {v(t0)}
        v_lshl_add_u32 {v(PADK)}, {v(t1)}, 2, {v(PADK)}
        v_lshrrev_b32 {v(t2)}, 5, v1
        v_lshlrev_b32 {v(t3)}, 2, {v(t2)}
        v_sub_u32 {v(PADK)}, {v(PADK)}, {v(t3)}
        s_add_u32 {sT0}, {sL}, 4096
        v_add_u32 {v(PADK)}, {sT0}, {v(PADK)}
        s_add_u32 {sT0}, {sHB}, 57
        v_min_u32 {v(PADU)}, {sT0}, v1
        s_mul_i32 {sT0}, {sW}, {UB}
        s_add_u32 {sT0}, {sT0}, {L_U}
        v_lshl_add_u32 {v(PADU)}, {v(PADU)}, 3, {sT0}
        v_and_b32 {v(t3)}, 1, v1
        v_mul_u32_u24 {v(UW)}, {UCH}, {v(t3)}
        v_lshrrev_b32 {v(UAD)}, 1, v1
        s_lshl_b32 {sT0}, {sW}, 6
        v_add_u32 {v(UAD)}, {sT0}, {v(UAD)}
        v_lshl_add_u32 {v(UW)}, {v(UAD)}, 4, {v(UW)}
        v_add_u32 {v(UW)}, {L_U}, {v(UW)}
        v_mul_u32_u24 {v(UAD)}, 10240, {v(UAD)}
        v_lshl_add_u32 {v(UAD)}, {v(t3)}, 4, {v(UAD)}
        s_lshl_b32 {sT0}, {sPAIR}, 5
        s_add_u32 {sT0}, {sT0}, {WS_G}
        v_add_u32 {v(UAD)}, {sT0}, {v(UAD)}
        s_lshl_b32 {sT1}, {sHB}, 8
        s_sub_u32 {sL}, {sL}, {sT1}
        v_mul_u32_u24 {v(t3)}, {UB}, {v(t3)}
        v_bfe_u32 {v(VB)}, v1, 1, 3
        v_lshlrev_b32 {v(VB)}, 6, {v(VB)}
        v_lshl_add_u32 {v(VB)}, {v(t0)}, 4, {v(VB)}
        v_sub_u32 {v(VB)}, {v(VB)}, {v(t3)}
        s_mul_i32 {sT0}, {sCH}, {UCH}
        s_sub_u32 {sT0}, {sT0}, {sT1}
        s_add_u32 {sT0}, {sT0}, {L_U + UB + 464 - 192}
        v_add_u32 {v(VB)}, {sT0}, {v(VB)}
        v_and_b32 {v(t3)}, 3, v1
        v_sub_u32 {v(VA)}, 3, {v(t3)}
        v_mul_u32_u24 {v(VA)}, {KS}, {v(VA)}
        v_lshl_add_u32 {v(VA)}, {v(t0)}, 4, {v(VA)}
        v_and_b32 {v(FINR)}, 12, v1
        v_lshlrev_b32 {v(FINR)}, 2, {v(FINR)}
        v_sub_u32 {v(VA)}, {v(VA)}, {v(FINR)}
        s_add_u32 {sT0}, {sL}, {4080 - 192 - 3584}
        v_add_u32 {v(VA)}, {sT0}, {v(VA)}
        v_and_b32 {v(FINR)}, 24, v1
        v_lshlrev_b32 {v(FINR)}, 1, {v(FINR)}
        v_and_b32 {v(HSV)}, 4, v1
        v_lshl_add_u32 {v(FINR)}, {v(HSV)}, 4, {v(FINR)}
        v_lshl_add_u32 {v(HSV)}, {v(t2)}, 2, {v(t3)}
        v_mul_u32_u24 {v(HSV)}, {PR_}, {v(HSV)}
        v_add_u32 {v(FINR)}, {v(FINR)}, {v(HSV)}
        s_mul_i32 {sT0}, {sCH}, {2*PW_}
        s_mul_i32 {sT1}, {sHB}, {16*PR_}
        s_add_u32 {sT0}, {sT0}, {sT1}
        v_add_u32 {v(FINR)}, {sT0}, {v(FINR)}
        s_lshl_b32 {sT0}, {sW}, 11
        s_add_u32 {sT0}, {sT0}, {WS_F1}
        v_lshrrev_b32 {v(FALL)}, 2, v1
        v_lshl_add_u32 {v(FALL)}, {v(FALL)}, 7, {sT0}
        v_lshl_add_u32 {v(FALL)}, {v(t3)}, 3, {v(FALL)}
        v_mov_b64 {v(ZERO,2)}, 0
        """)
        adc = s; s = S()
        s.I(f"""
        s_lshl_b32 {sT0}, {sRB}, 2
        s_add_u32 {sL}, {sT0}, {sW}
        s_mul_i32 {sT0}, {sL}, 40960
        s_add_u32 {sT0}, {sT0}, {WS_XF}
        v_add_u32 {v(XNV)}, {sT0}, v2
        s_mul_i32 {sHS}, {sL}, {2*54*1024}
        s_lshl_b32 {sT1}, {sCT}, 12
        s_add_u32 {sHS}, {sHS}, {sT1}
        s_add_u32 {sHS}, {sHS}, {WS_HF}
        s_mul_i32 {sF2O}, {sL}, 14
        s_add_u32 {sF2O}, {sF2O}, {sCT}
        s_lshl_b32 {sF2O}, {sF2O}, 7
        s_add_u32 {sF2O}, {sF2O}, {WS_F2}
        v_bfe_u32 {v(TR+1)}, v1, 2, 2
        v_lshl_add_u32 {v(TR)}, {v(t2)}, 3, {v(TR+1)}
        v_lshlrev_b32 {v(TR)}, 8, {v(TR)}
        v_lshl_add_u32 {v(TR)}, {v(TR+1)}, 6, {v(TR)}
        v_lshl_add_u32 {v(TR)}, {v(t3)}, 3, {v(TR)}
        v_and_b32 {v(t3)}, 1, {v(t0)}
        v_lshl_add_u32 {v(TR)}, {v(t3)}, 5, {v(TR)}
        v_xor_b32 {v(TR+1)}, 64, {v(TR)}
        v_xor_b32 {v(TR+2)}, 128, {v(TR)}
        v_xor_b32 {v(TR+3)}, 192, {v(TR)}
        s_lshl_b32 {sT0}, {sCT}, 8
        v_lshl_add_u32 {v(B1V)}, v1, 1, {sT0}
        v_lshl_or_b32 {v(B1V)}, {v(t2)}, 30, {v(B1V)}
        v_mul_u32_u24 {v(HSV)}, {54*1024}, {v(t3)}
        v_lshl_add_u32 {v(HSV)}, {v(t1)}, 4, {v(HSV)}
        v_lshl_add_u32 {v(HSV)}, {v(t2)}, 8, {v(HSV)}
        s_lshl_b32 {sT0}, {sL}, 11
        s_add_u32 {sT0}, {sT0}, {WS_FX}
        v_lshl_add_u32 {v(F1A)}, {v(t1)}, 7, {sT0}
        v_mov_b32 {v(K0)}, {hx(f2u(-2*math.sqrt(2/math.pi)*LOG2E))}
        v_mov_b32 {v(K1)}, {hx(f2u(-2*math.sqrt(2/math.pi)*LOG2E*0.044715))}
        v_mov_b32 {v(ONE)}, 1.0""")
        g2 = S()
        g2.I(f"""s_mul_i32 {sT0}, {sW}, {14*40*1024}
        s_mul_i32 {sT1}, {sCT2}, 5120
        s_add_u32 {sT0}, {sT0}, {sT1}
        s_add_u32 {sT0}, {sT0}, {WS_W2F}
        v_add_u32 {v(W2PV)}, {sT0}, v2
        v_add_u32 {v(W2PV+1)}, 4096, {v(W2PV)}
        s_cmp_eq_u32 {sW}, 3
        s_cselect_b32 {sOOB}, 0x70000000, 0
        s_mul_i32 {sT0}, {sRB64}, {4*54*1024}
        s_mul_i32 {sT1}, {sW}, {14*1024}
        s_add_u32 {sT0}, {sT0}, {sT1}
        s_add_u32 {sT0}, {sT0}, {WS_HF}
        v_add_u32 {v(HV)}, {sT0}, v2
        v_or_b32 {v(HV2)}, {sOOB}, {v(HV)}
        v_lshrrev_b32 {v(SLD)}, 3, v1
        v_lshlrev_b32 {v(SLD)}, 12, {v(SLD)}
        v_and_b32 {v(t0)}, 7, v1
        v_lshl_add_u32 {v(SLD)}, {v(t0)}, 4, {v(SLD)}
        s_mul_i32 {sT0}, {sCT2}, {80*4096}
        s_lshl_b32 {sT1}, {sRB64}, 7
        s_add_u32 {sT0}, {sT0}, {sT1}
        s_lshl_b32 {sT1}, {sW}, 15
        s_add_u32 {sT0}, {sT0}, {sT1}
        s_add_u32 {sT0}, {sT0}, {WS_ST}
        v_add_u32 {v(SLD)}, {sT0}, {v(SLD)}
        v_min_u32 {v(t0)}, 39, v1
        v_mul_u32_u24 {v(t1)}, 26, {v(t0)}
        v_lshrrev_b32 {v(t1)}, 8, {v(t1)}
        v_mul_u32_u24 {v(t2)}, 10, {v(t1)}
        v_sub_u32 {v(t2)}, {v(t0)}, {v(t2)}
        v_lshl_add_u32 {v(t3)}, {v(t1)}, 2, {sW}
        v_mul_u32_u24 {v(XO)}, 1280, {v(t3)}
        v_lshl_add_u32 {v(XO)}, {v(t2)}, 4, {v(XO)}
        s_mul_i32 {sT0}, {sRB64}, {64*1280}
        s_mul_i32 {sT1}, {sCT2}, 160
        s_add_u32 {sT0}, {sT0}, {sT1}
        v_add_u32 {v(XO)}, {sT0}, {v(XO)}
        v_cmp_gt_u32 vcc, 40, v1
        v_mov_b32 {v(t0)}, 0x70000000
        v_lshl_add_u32 {v(B2A)}, {v(t2)}, 4, {sT1}
        v_cndmask_b32 {v(XO)}, {v(t0)}, {v(XO)}, vcc
        v_mul_u32_u24 {v(SRD_)}, 1040, {v(t2)}
        v_and_b32 {v(t0)}, 1, {v(t1)}
        v_lshl_add_u32 {v(SRD_)}, {v(t0)}, 3, {v(SRD_)}
        v_lshrrev_b32 {v(t0)}, 1, {v(t1)}
        v_lshl_add_u32 {v(SRD_)}, {v(t0)}, 6, {v(SRD_)}
        s_lshl_b32 {sT0}, {sW}, 4
        s_add_u32 {sT0}, {sT0}, {L_ST}
        v_add_u32 {v(SRD_)}, {sT0}, {v(SRD_)}
        v_lshrrev_b32 {v(t0)}, 1, {v(t2)}
        v_mul_u32_u24 {v(PRD)}, {PBN}, {v(t0)}
        v_lshl_add_u32 {v(PRD)}, {v(t1)}, 6, {v(PRD)}
        v_and_b32 {v(t0)}, 1, {v(t2)}
        v_lshl_add_u32 {v(PRD)}, {v(t0)}, 5, {v(PRD)}
        s_lshl_b32 {sT0}, {sW}, 8
        s_add_u32 {sT0}, {sT0}, {L_PB}
        v_add_u32 {v(PRD)}, {sT0}, {v(PRD)}
        s_mul_i32 {sT0}, {sW}, 1040
        s_add_u32 {sT0}, {sT0}, {L_ST}
        v_add_u32 {v(SWR)}, {sT0}, v2
        s_mul_i32 {sT0}, {sCT2}, 40
        s_lshl_b32 {sT1}, {sW}, 2
        s_add_u32 {sT0}, {sT0}, {sT1}
        s_lshl_b32 {sT0}, {sT0}, 7
        s_add_u32 {sT0}, {sT0}, {WS_F3}
        s_cmp_lt_u32 {sW}, 2
        s_cselect_b32 {sT1}, 2, 1
        v_lshrrev_b32 {v(t0)}, 2, v1
        v_min_u32 {v(t0)}, {sT1}, {v(t0)}
        v_lshl_add_u32 {v(F3A)}, {v(t0)}, 11, {sT0}
        v_and_b32 {v(t1)}, 3, v1
        v_lshl_add_u32 {v(F3A)}, {v(t1)}, 7, {v(F3A)}
        s_mul_i32 {sT0}, {sRB64}, 28
        s_mul_i32 {sT1}, {sW}, 7
        s_lshr_b32 {sT1}, {sT1}, 1
        s_add_u32 {sT0}, {sT0}, {sT1}
        s_lshl_b32 {sT0}, {sT0}, 7
        s_add_u32 {sT0}, {sT0}, {WS_F2}
        v_lshl_add_u32 {v(F2A)}, {v(t1)}, 7, {sT0}
        v_bfe_u32 {v(t0)}, v1, 2, 1
        v_mul_u32_u24 {v(t0)}, {14*128}, {v(t0)}
        v_add_u32 {v(F2A)}, {v(F2A)}, {v(t0)}""")
        return adk, S().I(common), adc, s, g2

    def build(self):
        c = self.c; self.ool = []
        nt = " nt" if c.nt1 else ""
        s = S()
        XR = 84; EP = 94
        xa, xb, w2v, pa, pb, lw0, lw1, xfr, gtr, xfs, w2t = 100, 101, 102, 104, 105, 106, 107, 108, 109, 110, 116
        self.pa, self.pb, self.w2t = pa, pb, w2t
        s.I(f"""s_load_dwordx16 s[4:19], s[0:1], 0
        s_load_dwordx16 s[20:35], s[0:1], 64
        s_load_dwordx2 s[36:37], s[0:1], 128""")
        if c.stamps or c.probe: s.I(f"s_memtime s[100:101]\ns_memrealtime s[98:99]")
        s.I(f"""s_cmp_ge_u32 s2, 256
        s_cbranch_scc1 L_end
        v_lshrrev_b32 {v(lw0)}, 5, v0
        s_mul_i32 {sT0}, s2, 10240
        v_lshl_add_u32 {v(xb)}, {v(lw0)}, 10, {sT0}
        v_lshlrev_b32 {v(xa)}, 8, {v(lw0)}
        v_sub_u32 {v(xa)}, {v(xb)}, {v(xa)}
        v_lshl_add_u32 {v(xa)}, v0, 4, {v(xa)}
        v_lshl_add_u32 {v(xb)}, v0, 3, {v(xb)}""")
        if c.pf:
            s.I(f"""s_getpc_b64 s[38:39]
            s_lshr_b32 {sSLOT}, s2, 3
            s_mul_i32 {sT0}, {sSLOT}, 1536
            v_and_b32 v1, 63, v0
            v_lshl_add_u32 v7, v0, 7, {sT0}
            v_min_u32 v7, CODE_BYTES, v7
            v_cmp_gt_u32 vcc, 12, v0
            s_and_saveexec_b64 s[96:97], vcc
            s_cbranch_execz L_nopf""")
            s.VM(f"global_load_dword v5, v7, s[38:39]", "pf", True)
            s.I("L_nopf:\ns_mov_b64 exec, s[96:97]")
        else:
            s.I(f"s_lshr_b32 {sSLOT}, s2, 3\nv_and_b32 v1, 63, v0")
        s.I("s_waitcnt lgkmcnt(0)")
        s.VM(f"global_load_dwordx4 {v(XR,4)}, {v(xa)}, {sX}{nt}", "x")
        s.VM(f"global_load_dwordx4 {v(XR+4,4)}, {v(xa)}, {sX} offset:512{nt}", "x")
        s.VM(f"global_load_dwordx2 {v(XR+8,2)}, {v(xb)}, {sX} offset:1024{nt}", "x")
        s.I(f"""v_lshrrev_b32 v6, 6, v0
        v_mov_b32 v3, 0
        v_mov_b32 v111, 0
        v_readfirstlane_b32 {sW}, v6
        s_add_u32 s40, s36, {c.wsoff}
        s_addc_u32 s41, s37, 0
        s_mov_b32 s42, {WS_SIZE}
        s_mov_b32 s43, 0x20000""")
        self.stamp(s, "karg")
        s.VM(f"buffer_load_dwordx2 {v(EP,2)}, v111, {RWS}, 0 offen sc1", "ep")
        s.I(f"""s_mov_b64 s[48:49], s[28:29]
        s_mov_b32 s50, {1728*1280}
        s_mov_b32 s51, 0x20000
        v_lshrrev_b32 v112, 4, v1
        v_and_b32 v113, 15, v1
        v_lshlrev_b32 v114, 1, v112
        v_xor_b32 v114, v114, v113
        v_mul_u32_u24 {v(w2v)}, 1280, v112
        v_lshl_add_u32 {v(w2v)}, v114, 4, {v(w2v)}
        v_xor_b32 {v(w2v+1)}, 128, {v(w2v)}
        v_add_u32 {v(w2v+1)}, {4*1280-1024}, {v(w2v+1)}""")
        self.w2unit_dma(s, "s2", L_W2S, w2v, "w2u")
        s.I(f"s_sub_u32 {sT3}, s2, 224\ns_cmp_ge_u32 {sT3}, 14\ns_cbranch_scc1 L_j0")
        g = S()
        g.I(f"s_add_u32 {sT3}, s2, 32")
        self.w2unit_dma(g, sT3, L_W2S2, w2v, "w2u")
        for it in flat(g):
            if it.kind == "vm": it.opt = True
        s += g
        s.I(f"""L_j0:
        s_and_b32 {sXCD}, s2, 7
        s_mul_i32 {sPAIR}, {sXCD}, 40
        s_add_u32 {sPAIR}, {sPAIR}, {sSLOT}
        s_sub_u32 {sT0}, {sSLOT}, 28
        s_lshl_b32 {sT0}, {sT0}, 1
        s_cmp_ge_u32 {sSLOT}, 28
        s_cselect_b32 {sT0}, {sT0}, 0
        s_add_u32 {sPAIR}, {sPAIR}, {sT0}
        s_lshl_b32 {sT0}, {sPAIR}, 9
        v_lshl_add_u32 {v(pa)}, v0, 1, {sT0}
        s_lshl_b32 {sT0}, {sPAIR}, 2
        s_and_b32 {sT1}, {sW}, 2
        s_add_u32 {sT0}, {sT0}, {sT1}
        v_mov_b32 {v(pb)}, {sT0}""")
        for i in range(PR, PR + 8, 2): s.I(f"v_mov_b64 {v(i,2)}, 0")
        self.param_loads(s, PR, pa, pb, "par0")
        s.I(f"""s_lshr_b32 {sT0}, {sXCD}, 1
        s_lshl_b32 {sT0}, {sT0}, 2
        s_and_b32 {sRB}, {sSLOT}, 3
        s_add_u32 {sRB}, {sRB}, {sT0}
        s_and_b32 {sT0}, {sXCD}, 1
        s_mul_i32 {sT0}, {sT0}, 7
        s_lshr_b32 {sCT}, {sSLOT}, 2
        s_add_u32 {sCT}, {sCT}, {sT0}
        v_lshlrev_b32 v114, 2, v112
        v_xor_b32 v114, v114, v113
        v_mul_u32_u24 v4, 3456, v112
        v_lshl_add_u32 v4, v114, 4, v4
        v_add_u32 v115, 12800, v4
        v_add_u32 v6, {2*12800}, v4
        v_add_u32 v7, {3*12800}, v4
        s_sub_u32 {sT0}, {sRB}, 10
        s_min_u32 {sT0}, {sT0}, {sRB}
        s_lshl_b32 s{GX}, {sT0}, 12
        s_mul_i32 {sW1C}, {sW}, 55296
        s_lshl_b32 {sT1}, {sCT}, 8
        s_add_u32 {sW1C}, {sW1C}, {sT1}
        s_lshl_b32 {sW12}, {sW}, 12
        s_mov_b64 s[44:45], s[24:25]
        s_mov_b32 s46, {640*3456}
        s_mov_b32 s47, 0x20000""")
        def guarded(g_, sub):
            l = self.lab("eg")
            g = self.w1_dma(g_)
            for it in flat(g):
                if it.kind == "vm":
                    it.opt = True
                    if sub: it.text = it.text.replace("v5,", "v115,")
            s.I(f"s_cmp_ge_u32 {sSLOT}, 28\ns_cbranch_scc1 {l}")
            s.extend(g); s.I(f"{l}:")
        if 'now0' not in c.exp: guarded(0, True)
        self.stamp(s, "iss0")
        for g_ in range(1, 10):
            s.I(f"s_add_u32 {sT0}, s{GX}, {g_*4096}\ns_sub_u32 {sT1}, {sT0}, 40960\ns_min_u32 s{GX+g_}, {sT0}, {sT1}")
        s.I(f"""v_lshlrev_b32 v2, 4, v1
        v_and_b32 {v(lw1)}, 31, v0
        v_mul_u32_u24 {v(lw0)}, {LNS}, {v(lw0)}
        v_add_u32 {v(lw0)}, {L_LNI}, {v(lw0)}
        v_lshl_add_u32 v112, {v(lw1)}, 3, {v(lw0)}
        v_lshl_add_u32 {v(lw0)}, {v(lw1)}, 4, {v(lw0)}
        v_mov_b32 {v(lw1)}, v112
        v_and_b32 v112, 7, v1
        v_lshrrev_b32 v113, 3, v1
        v_mul_u32_u24 {v(xfr)}, {LNS}, v112
        v_lshl_add_u32 {v(xfr)}, v113, 4, {v(xfr)}
        s_lshl_b32 {sT0}, {sW}, 7
        s_add_u32 {sT0}, {sT0}, {L_LNI}
        v_add_u32 {v(xfr)}, {sT0}, {v(xfr)}
        v_lshlrev_b32 {v(xfs)}, 4, v112
        v_lshl_add_u32 {v(xfs)}, v113, 9, {v(xfs)}
        v_bfe_u32 v112, v1, 2, 2
        v_mul_u32_u24 {v(gtr)}, {LNS}, v112
        v_lshrrev_b32 v113, 4, v1
        v_lshl_add_u32 {v(gtr)}, v113, 5, {v(gtr)}
        v_and_b32 v114, 3, v1
        v_lshl_add_u32 {v(gtr)}, v114, 3, {v(gtr)}
        v_add_u32 {v(gtr)}, {sT0}, {v(gtr)}
        v_bfe_u32 v112, v1, 2, 3
        v_lshrrev_b32 v113, 5, v1
        v_lshl_add_u32 v113, v113, 4, v112
        v_lshlrev_b32 v113, 8, v113
        v_lshl_add_u32 v113, v114, 3, v113
        s_lshl_b32 {sT0}, {sW}, 1
        v_xor_b32 v112, {sT0}, v112
        v_lshl_add_u32 {v(w2t)}, v112, 5, v113
        v_add_u32 {v(w2t)}, {L_W2S}, {v(w2t)}
        v_xor_b32 {v(w2t+1)}, 32, {v(w2t)}
        s_mov_b64 s[52:53], s[26:27]
        s_mov_b32 s54, {1728*2}
        s_mov_b32 s55, 0x20000
        s_mov_b64 s[56:57], s[4:5]
        s_mov_b32 s58, {2048*1280}
        s_mov_b32 s59, 0x20000
        s_mov_b64 s[60:61], s[32:33]
        s_mov_b32 s62, {2048*1280}
        s_mov_b32 s63, 0x20000
        s_lshr_b32 s22, s2, 2
        s_mul_i32 s22, s22, 40960
        s_and_b32 {sT0}, s2, 3
        s_lshl_b32 {sT0}, {sT0}, 7
        s_add_u32 s22, s22, {sT0}
        s_add_u32 s22, s22, {sW12}
        s_add_u32 s22, s22, {WS_XF}
        s_mul_i32 s23, s2, 10240
        s_lshl_b32 {sT0}, {sW}, 10
        s_add_u32 s23, s23, {sT0}
        s_add_u32 s23, s23, {WS_G}
        s_add_u32 s34, s22, 16384
        s_add_u32 s35, s23, 4096
        s_add_u32 s32, s22, 32768
        s_add_u32 s33, s23, 8192
        s_cmp_ge_u32 {sW}, 2
        s_cselect_b32 {sT0}, 0x70000000, 0
        v_or_b32 v118, {sT0}, {v(xfs)}
        v_or_b32 v119, {sT0}, v2""")
        ntl = 0
        if "tlb" in c.exp:
            s.I("s_mov_b64 exec, 1")
            for so in ("s22", "s23"):
                s.VM(f"buffer_load_dword v126, v2, {RWS}, {so} offen", "tl"); ntl += 1
            s.I(f"s_lshl_b32 {sT0}, s2, 9\ns_add_u32 {sT0}, {sT0}, {WS_FX}")
            s.VM(f"buffer_load_dword v126, v2, {RWS}, {sT0} offen", "tl"); ntl += 1
            s.I("s_mov_b64 exec, -1")
        if c.early >= 1: guarded(1, True)
        self.stamp(s, "addr")
        def rolewait(nm, ns_):
            l1, l2 = self.lab("rw"), self.lab("rw")
            s.I(f"s_cmp_ge_u32 {sSLOT}, 28\ns_cbranch_scc1 {l1}\ns_waitcnt vmcnt({nm})\ns_branch {l2}\n{l1}:\ns_waitcnt vmcnt({ns_})\n{l2}:")
        nw1 = 4 + 4 * min(c.early, 1)
        if 'now0' in c.exp: nw1 = 0
        F = 64
        rolewait(11 + nw1 + ntl, 11 + ntl)
        self.stamp(s, "x")
        s.I("v_add_u32 v5, 12800, v4")
        for i in range(10):
            s.I(f"v_lshlrev_b32 {v(F+2*i)}, 16, {v(XR+i)}\nv_and_b32 {v(F+2*i+1)}, 0xffff0000, {v(XR+i)}")
        def reduce32(r, t):
            for sh in (8, 4, 2, 1):
                s.I(f"v_add_f32_dpp {v(r)}, {v(r)}, {v(r)} row_ror:{sh} row_mask:0xf bank_mask:0xf")
            s.I(f"v_mov_b32 {v(t)}, {v(r)}\nv_permlane16_swap_b32 {v(r)}, {v(t)}\nv_add_f32 {v(r)}, {v(r)}, {v(t)}")
        T = 120
        s.I(f"v_pk_add_f32 {v(T,2)}, {v(F,2)}, {v(F+2,2)}")
        for i in range(2, 10):
            s.I(f"v_pk_add_f32 {v(T,2)}, {v(T,2)}, {v(F+2*i,2)}")
        s.I(f"v_add_f32 {v(T)}, {v(T)}, {v(T+1)}")
        reduce32(T, T+1)
        s.I(f"v_mul_f32 {v(T+4)}, {hx(f2u(1/640))}, {v(T)}")
        for i in range(10):
            s.I(f"v_pk_add_f32 {v(F+2*i,2)}, {v(F+2*i,2)}, {v(T+4,2)} op_sel_hi:[1,0] neg_lo:[0,1] neg_hi:[0,1]")
        s.I(f"v_pk_mul_f32 {v(T,2)}, {v(F,2)}, {v(F,2)}")
        for i in range(1, 10):
            s.I(f"v_pk_fma_f32 {v(T,2)}, {v(F+2*i,2)}, {v(F+2*i,2)}, {v(T,2)}")
        s.I(f"v_add_f32 {v(T)}, {v(T)}, {v(T+1)}")
        reduce32(T, T+1)
        s.I(f"""v_mul_f32 {v(T)}, {hx(f2u(1/640))}, {v(T)}
        v_cvt_pk_bf16_f32 {v(T)}, {v(T)}, {v(T+4)}
        v_and_b32 {v(T+5)}, 0xffff0000, {v(T)}
        v_lshlrev_b32 {v(T)}, 16, {v(T)}
        v_add_f32 {v(T)}, {hx(f2u(1e-5))}, {v(T)}
        v_cvt_pk_bf16_f32 {v(T)}, {v(T)}, {v(T)}
        v_lshlrev_b32 {v(T)}, 16, {v(T)}
        v_sqrt_f32 {v(T)}, {v(T)}
        v_sub_f32 {v(T+5)}, {v(T+4)}, {v(T+5)}
        v_cvt_pk_bf16_f32 {v(T)}, {v(T)}, {v(T)}
        v_lshlrev_b32 {v(T)}, 16, {v(T)}
        v_rcp_f32 {v(T)}, {v(T)}
        v_mul_f32 {v(T+2)}, {v(T+5)}, {v(T)}""")
        for i in range(10):
            s.I(f"v_pk_fma_f32 {v(F+2*i,2)}, {v(F+2*i,2)}, {v(T,2)}, {v(T+2,2)} op_sel_hi:[1,0,0]")
            s.I(f"v_cvt_pk_bf16_f32 {v(XR+i)}, {v(F+2*i)}, {v(F+2*i+1)}")
        s.DS(f"ds_write_b128 {v(lw0)}, {v(XR,4)}", "lni")
        s.DS(f"ds_write_b128 {v(lw0)}, {v(XR+4,4)} offset:512", "lni")
        s.DS(f"ds_write_b64 {v(lw1)}, {v(XR+8,2)} offset:1024", "lni")
        self.stamp(s, "ln")
        s.WL0()
        s.I("s_barrier")
        self.stamp(s, "lnbar")
        D = 160
        for i in range(3):
            s.DS(f"ds_read_b128 {v(D+4*i,4)}, {v(xfr)} offset:{i*512}", f"xf{i}")
        for i in range(3):
            s.DS(f"ds_read_b64_tr_b16 {v(D+12+4*i,2)}, {v(gtr)} offset:{i*512}", f"gt{i}")
            s.DS(f"ds_read_b64_tr_b16 {v(D+14+4*i,2)}, {v(gtr)} offset:{i*512+4*LNS}", f"gt{i}")
        for i, so in enumerate(("s22", "s34", "s32")):
            s.WL(f"xf{i}")
            s.VM(f"buffer_store_dwordx4 {v(D+4*i,4)}, {v(xfs if i < 2 else 118)}, {RWS}, {so} offen sc1", "xfst")
        self.stamp(s, "st")
        pre = S()
        if c.g2map == "4x8":
            pre.I(f"""s_lshl_b32 {sRB64}, {sXCD}, 2
            s_lshr_b32 {sT0}, {sSLOT}, 3
            s_add_u32 {sRB64}, {sRB64}, {sT0}
            s_and_b32 {sCT2}, {sSLOT}, 7""")
        else:
            pre.I(f"""s_lshr_b32 {sRB64}, {sXCD}, 1
            s_lshl_b32 {sRB64}, {sRB64}, 3
            s_lshr_b32 {sT0}, {sSLOT}, 2
            s_add_u32 {sRB64}, {sRB64}, {sT0}
            s_and_b32 {sCT2}, {sXCD}, 1
            s_lshl_b32 {sCT2}, {sCT2}, 2
            s_and_b32 {sT0}, {sSLOT}, 3
            s_add_u32 {sCT2}, {sCT2}, {sT0}""")
        pre.I(f"""s_lshl_b32 s34, s2, 2
        s_add_u32 s34, s34, {sW}
        s_lshl_b32 s22, s34, 11
        s_add_u32 s22, s22, {WS_W2F}
        s_add_u32 s32, s22, {32*8192}
        s_lshl_b32 s34, s34, 7
        s_add_u32 s34, s34, {WS_FX}
        s_lshr_b32 s28, s2, 2
        s_lshl_b32 s28, s28, 7
        s_and_b32 {sT0}, s2, 3
        s_lshl_b32 {sT0}, {sT0}, 3
        s_add_u32 s28, s28, {sT0}
        s_add_u32 s28, s28, {WS_F1}""")
        s += pre
        rolewait(13 + nw1 + ntl, 13 + ntl)
        s.I(f"""v_readfirstlane_b32 s70, {v(EP)}
        v_readfirstlane_b32 s71, {v(EP+1)}
        v_mov_b64 v[148:149], {v(w2t,2)}
        s_mul_i32 s70, s70, 0x9E3779B1
        s_add_u32 s70, s70, 0x7F4A7C15
        s_add_u32 s71, s71, 1
        v_mov_b32 {v(FT)}, s70
        v_mov_b32 {v(FT+1)}, s71
        v_mov_b32 v150, v119
        s_cmp_ge_u32 {sSLOT}, 28
        s_cbranch_scc1 L_spare""")
        def p1tail(spare):
            t = S()
            self.stamp(t, "c2")
            t.WV("xfst")
            self.flag_set(t, "s34", False)
            self.stamp(t, "fx")
            for i, so in enumerate(("s23", "s35", "s33" if spare else "s29")):
                t.WL(f"gt{i}").VM(f"buffer_store_dwordx4 {v(D+12+4*i,4)}, {v(2 if i < 2 else 150)}, {RWS}, {so} offen sc1", "p1st")
            t.I("s_barrier")
            self.w2unit_rd(t, 148, D+24)
            t.WL("w2u")
            t.VM(f"buffer_store_dwordx4 {v(D+24,4)}, v2, {RWS}, s22 offen sc1", "p1st")
            t.VM(f"buffer_store_dwordx4 {v(D+28,4)}, v2, {RWS}, s22 offen offset:1024 sc1", "p1st")
            if spare:
                t.I(f"s_cmp_ge_u32 s2, 238\ns_cbranch_scc1 L_nou2")
                t.I(f"v_subrev_u32 v148, {L_W2S - L_W2S2}, v148\nv_subrev_u32 v149, {L_W2S - L_W2S2}, v149")
                self.w2unit_rd(t, 148, D)
                t.WL0()
                t.VM(f"buffer_store_dwordx4 {v(D,4)}, v2, {RWS}, s32 offen sc1", "p1st", True)
                t.VM(f"buffer_store_dwordx4 {v(D+4,4)}, v2, {RWS}, s32 offen offset:1024 sc1", "p1st", True)
                t.I("L_nou2:")
            return t
        self.p1tail = p1tail
        common_prefix = S(s)
        adk, cm, adc, adg, ad2 = self.addresses()
        s.I("s_mov_b32 s29, s33")
        md = self.w1_seq(range(1, 1 + c.mid))
        s += ad2; s += adk
        s += sprinkle(S(adc + adg), md, 0)
        s += p1tail(False)
        self.stamp(s, "p1iss")
        main = self.main_path()
        g2 = self.gemm2()
        ool1 = self.ool; self.ool = []
        spare = self.spare_path()
        lines = resolve(S(s + main + g2))
        pre = resolve(S(common_prefix))
        sp = resolve(S(common_prefix + spare))[len(pre):]
        lines = lines + ["s_endpgm"] + ool1 + sp + self.ool
        lines += ["L_ret:", "s_mov_b64 exec, -1", "s_branch L_back_m"]
        lines, n = fix_hazards(lines)
        lines = [l.replace("CODE_BYTES", "0x12345") for l in lines]
        if c.hop:
            lines, np_ = add_pads(lines, [("m", "L_back_m", "L_end", "L_ret")], c.hop)
        if c.align: lines, na = align8(lines)
        total = sum(sizes(lines))
        assert total < 32 * 12 * 128, total
        lines = [l.replace("0x12345", hex((total - 256) & ~127)) for l in lines]
        self.total = total
        return lines

    def rst_zero(self, s, t=88):
        s.I(f"s_lshr_b32 {sT0}, {sW}, 1\ns_mul_i32 {sT0}, {sT0}, {RSTS}\ns_add_u32 {sT0}, {sT0}, {L_RST+4096}\nv_mov_b32 {v(t)}, {sT0}\nv_mov_b32 {v(t+1)}, 0")
        s.DS(f"ds_write_b32 {v(t)}, {v(t+1)}", "rst")

    def hops(self, s, name):
        if self.c.hop:
            s.I(f"""s_mov_b64 exec, 0
            s_cmp_eq_u32 {sW}, 0
            s_cbranch_scc1 L_pad_{name}_0
            s_cmp_eq_u32 {sW}, 1
            s_cbranch_scc1 L_pad_{name}_1
            s_cmp_eq_u32 {sW}, 2
            s_cbranch_scc1 L_pad_{name}_2
            s_branch L_pad_{name}_3""")
        s.I(f"L_back_{name}:")
    def fx_set(self):
        g = S(); self.stamp(g, "c2"); g.WV("p1st"); self.flag_set(g, "s34", False); self.stamp(g, "fx"); return grp(g)
    def xb_loads(self):
        xl = S()
        for mb in range(4):
            g = S(); g.I(f"s_mov_b32 {sT0}, {mb*16*1280}")
            g.VM(f"buffer_load_dwordx4 {v(XRf(mb),4)}, {v(XO)}, {RX}, {sT0} offen", f"x{mb}")
            xl.G(g)
        xl.VM(f"global_load_dwordx4 {v(48,4)}, {v(B2A)}, {sB2}", "b2")
        return xl

    NH = 18
    def hreg(self, k): return 64 + 4 * ((k + 8) % self.NH)
    def h_loads(self):
        out = []
        for k in range(56):
            mb, st = divmod(k, 14); g = S()
            if st % 4 == 0: g.I(f"s_mov_b32 {sL}, {(mb*54+st)*1024}")
            g.VM(f"buffer_load_dwordx4 {v(self.hreg(k),4)}, {v(HV if st < 12 else HV2)}, {RWS}, {sL} offen offset:{1024*(st%4)} sc1", f"h_{k}")
            out.append(g)
        return out
    def last_conv(self, wl, sides=(), nr=1, cap=2, ctl=None, start=2, cvend=None):
        c = self.c; o = 144 * (nr - 1)
        f2 = S(); self.flag_issue(f2, F2A, "f2")
        a_ = S(wl + f2)
        g = S(); self.stamp(g, "pre2"); g.WV("f2"); self.stamp(g, "got2"); self.flag_check(g, F2A, "f2"); self.stamp(g, "poll2")
        b_ = S(grp(g) + sum(self.h_loads()[:c.nh0], []))
        nv = sum(1 for it in flat(a_) if it.kind == "vm")
        cv = self.conv_main(list(sides) + [paced(a_, start, (o + (cvend or c.cvend) - start) / nv)[0], paced(b_, o + c.cvchk, (142 - c.cvchk) / c.nh0)[0]], nr, cap, ctl)
        tags = [it.tag for it in flat(cv) if it.kind == "vm" and not it.opt]
        assert tags[-c.nh0-1:] == ["f2"] + [f"h_{k}" for k in range(c.nh0)], tags
        return cv

    def main_path(self):
        c = self.c
        s = S()
        comp = self.kgen_chains(PR, "par0", TB)
        for i in list(range(160, 176)) + list(range(248, 252)): comp.I(f"v_mov_b32 {v(i)}, {'0x3f80' if i == 248 else 0}")
        dm = self.w1_seq(range(1 + c.mid, c.npre))
        s += sprinkle(comp, dm, c.dm0)
        for fb in range(4):
            s.VM(f"buffer_load_ushort {v(160+4*fb)}, {v(B1V)}, {RB1}, 0 offen offset:{64*fb}", "b1")
        self.flag_issue(s, F1A, "f1")
        if c.f1early:
            s.WV("p1st"); s.I("s_barrier"); self.flag_set(s, "s28", True)
        self.stamp(s, "dma16")
        ACC = 64
        self.hops(s, "m")
        self.flag_check(s, F1A, "f1")
        self.stamp(s, "poll1")
        for st in range(c.nup):
            s += self.xn_load(st)
            if st < 4: s.I(f"v_mfma_f32_32x32x16_bf16 {v(ACC+16*st,16)}, {v(160+4*st,4)}, {v(248,4)}, 0")
        s.I("s_barrier")
        if not c.glate and not c.f1early: self.flag_set(s, "s28", True)
        self.stamp(s, "g1s")
        W = 128; NB = 3; LEAD = 6
        slot = lambda st: 4 * self.LG[st // 4] + st % 4
        def rd(st, fb):
            o = W + 16*(st % NB) + 4*fb; r = S()
            for hh in range(2):
                r.DS(f"ds_read_b64_tr_b16 {v(o+2*hh,2)}, {v(TR+fb)} offset:{(slot(st)%16)*4096+hh*1024}", f"w_{st}_{fb}")
            return r
        seq = [(st, fb) for st in range(40) for fb in range(4)]
        for k in range(LEAD): s += rd(*seq[k])
        need = dict(c.need)
        cov = c.npre - 1
        for st_ in sorted(need):
            assert st_ <= 4 * (cov + 1) - 2, (st_, cov); cov = max(cov, need[st_])
        assert cov == 9 and max(need) >= 30 and c.fabar in need
        tws = 4 * min(k_ for k_ in need if k_ >= 17) + 3
        mf = []
        for k, (st, fb) in enumerate(seq):
            g = S()
            if fb == 0: g.WV(f"xn_{st}")
            if k + LEAD - 2 < len(seq):
                s2_, f2_ = seq[k + LEAD - 2]
                if s2_ < 39 and slot(s2_+1) // 16 != slot(s2_) // 16:
                    g.insert(0, S().I(f"v_add_u32 {v(TR+f2_)}, {hx((slot(s2_+1)//16 - slot(s2_)//16) * 0x10000)}, {v(TR+f2_)}")[0])
            if fb % 2 == 0: g.WL(f"w_{st}_{fb+1}")
            g.I(f"v_mfma_f32_32x32x16_bf16 {v(ACC+16*fb,16)}, {v(W+16*(st%NB)+4*fb,4)}, {a(4*st,4)}, {v(ACC+16*fb,16)}")
            if k + LEAD < len(seq): g += rd(*seq[k+LEAD])
            if fb == 1 and st == c.fabar: self.flag_check(g, FALL, "f1all")
            if fb == 1 and st in need:
                g.WV(f"w1_{need[st]}")
                if c.glate and st == c.gbar: g.WV("gl")
                g.I("s_barrier")
                if c.glate and st == c.gbar: self.flag_set(g, "s28", True)
            if fb == 3 and st % 5 == 4: self.stamp(g, f"g1_{st}")
            mf.append(Item("group", tag=list(g)))
        jobs = [(4 * st, self.xn_load(st)) for st in range(c.nup, 40)]
        prev_b, g0 = -c.dmlead, c.npre
        for st_ in sorted(need):
            gs = list(range(g0, need[st_] + 1)); g0 = max(g0, need[st_] + 1)
            units = []; cur = S()
            for it in self.w1_seq(gs):
                cur.append(it)
                if any(x.kind == "vm" for x in flat([it])): units.append(cur); cur = S()
            b_ = 4 * st_ + 1 - c.dmlead
            for i, u_ in enumerate(units): jobs.append((prev_b + (b_ - prev_b) * (i + 1) / len(units), u_))
            if units: prev_b = b_
        g = S(); self.flag_issue(g, FALL, "f1all"); jobs.append((4 * c.fabar, g))
        if c.glate:
            for i, (vo, so, off) in enumerate(((2, "s23", 0), (2, "s35", 0), (27, "s29", 0), (2, "s22", 0), (2, "s22", 1024))):
                jobs.append((c.gdl + 0.01 * i, S().VM(f"buffer_store_dwordx4 {a(160+4*i,4)}, {v(vo)}, {RWS}, {so} offen offset:{off} sc1", "gl")))
        jobs.sort(key=lambda j: j[0])
        ex = S(sum((j[1] for j in jobs), []))
        g = S(); self.u_loads(g, v(U,4), v(U+4,4), "u")
        sd0, x_end = paced(ex, 0, c.xpace)
        sides = [sd0]
        dm_last = max(p_ for it, p_ in zip(ex, sd0[2]) if any(x.kind == 'vm' and x.text.endswith('lds') for x in flat([it])))
        wl = self.w2p_loads(0, 40)
        tw = S().I(f"s_mov_b32 m0, {sMT}")
        for row in range(63): tw.DS(f"ds_write_addtid_b32 {v(TB+row)} offset:{row*TROW}", "tbl")
        ns = len(sides)
        u0 = max(x_end + 2, 4 * c.fabar + 3)
        w_, _ = paced(wl, u0 + 2 * c.upace, c.wpace)
        uw_ = (u0, S(g + wl), [u0, u0, u0 + c.upace] + w_[2])
        sides += [uw_, (max(tws, dm_last + 3), tw, 0.8), (c.upos, self.prep_u(lambda i, n: v(U+i, n), "u"), 2)]
        body, rests = fill(mf, sides, c.g1cap)
        fl = flat(body)
        order = [it.tag for it in fl if it.kind == "vm" and not it.opt]
        want = [it.tag for it in flat(ex) if it.kind == "vm"]
        assert order[:len(want)] == want
        for st_, g_ in need.items():
            w_ = [i for i, it in enumerate(fl) if it.kind == "wv" and it.tag == f"w1_{g_}"][0]
            assert g_ < c.npre or sum(1 for it in fl[:w_] if it.kind == "vm" and it.tag == f"w1_{g_}") == 4
        last_dma = max(i for i, it in enumerate(fl) if it.kind == "vm" and it.text.endswith("lds"))
        first_m0 = min(i for i, it in enumerate(fl) if it.kind == "ins" and it.text == f"s_mov_b32 m0, {sMT}")
        assert first_m0 > last_dma and not any(rests[:ns])
        s += body
        s += rests[ns+1]
        rest = S(rests[ns])
        urest = S(rests[ns+2])
        s.WL0(); s.I("s_barrier")
        FR = [v(132+4*i, 4) for i in range(11)] + [v(208+4*i, 4) for i in range(8)] + [v(84+4*i, 4) for i in range(5)]
        kr, kuid = self.kgen_reads(FR)
        s += kr[:12]
        self.stamp(s, "g1e")
        H = 176; T = 128
        ge = S()
        for p in range(0, 32, 2):
            for pp in (p, p+1):
                x = ACC + 2*pp; t = T + 2*(pp % 2)
                ge.I(f"v_pk_mul_f32 {v(t,2)}, {v(x,2)}, {v(x,2)}")
                ge.I(f"v_pk_fma_f32 {v(t,2)}, {v(t,2)}, {v(K1,2)}, {v(K0,2)} op_sel_hi:[1,0,0]")
                ge.I(f"v_pk_mul_f32 {v(t,2)}, {v(t,2)}, {v(x,2)}")
            for i in range(4): ge.I(f"v_exp_f32 {v(T+i)}, {v(T+i)}")
            for pp in (p, p+1):
                t = T + 2*(pp % 2)
                ge.I(f"v_pk_add_f32 {v(t,2)}, {v(t,2)}, {v(ONE,2)} op_sel_hi:[1,0]")
            for i in range(4): ge.I(f"v_rcp_f32 {v(T+i)}, {v(T+i)}")
            for pp in (p, p+1):
                x = ACC + 2*pp; t = T + 2*(pp % 2)
                ge.I(f"v_pk_mul_f32 {v(t,2)}, {v(t,2)}, {v(x,2)}")
            for pp in (p, p+1):
                t = T + 2*(pp % 2)
                ge.I(f"v_cvt_pk_bf16_f32 {v(H+pp)}, {v(t)}, {v(t+1)}")
        q0 = 40 - sum(1 for it in flat(rest) if it.kind == 'vm')
        assert q0 >= 0
        q1 = q0 + c.ngelu
        if c.verbose: print("w2p loads in GEMM1", q0, "table writes left", len(rests[ns+1]), "u left", len(urest))
        def hstore(fb):
            g = S()
            if fb == 2: g.I(f"s_cmp_eq_u32 {sCT}, 13\ns_cselect_b32 {sT0}, 0x70000000, 0\nv_or_b32 {v(HSV)}, {sT0}, {v(HSV)}")
            o = S()
            for cc in range(2):
                g.VM(f"buffer_store_dwordx4 {v(H+8*fb+4*cc,4)}, {v(HSV)}, {RWS}, {sHS} offen offset:{fb*1024+cc*512} sc1", "hst")
                o.G(g); g = S()
            return o
        n4 = len(ge) // 4
        rz = S(); self.rst_zero(rz, 252)
        ge = S(ge[:40] + grp(S(kr[12:19] + rz)) + ge[40:3*n4] + grp(kr[19:]) + ge[3*n4:])
        hs = c.hsplit
        nl_ = (len(ge) * hs) // 8
        s += sprinkle(ge[:nl_], self.w2p_loads(q0, q1), 0)
        st_ = S()
        for fb in range(3): st_ += hstore(fb)
        g2_ = list(ge[nl_:]); out_ = S(); k_ = 0; step = max(1, (len(g2_) - 8) // 6)
        for i, it in enumerate(g2_):
            if k_ < 6 and i >= k_ * step and nl_ + i >= (k_ // 2 + 1) * n4 + 4: out_.append(st_[k_]); k_ += 1
            out_.append(it)
        s += out_; s += st_[k_:]
        self.stamp(s, "gel0")
        s += hstore(3)
        s += urest
        self.stamp(s, "gelu")
        q1b = q1 + c.nbub
        q2 = q1b + c.nkg
        bl = S()
        for it in self.w2p_loads(q1, q1b): bl.append(it); bl.SKIP(0)
        s += self.kgen_mfma(PR, FR, kuid, bl)
        q1 = q1b
        s.I("s_barrier")
        self.stamp(s, "kg2")
        p0, p1 = self.kgen_post(KEEP, KEEP + 8)
        s += p0
        s += sprinkle(S(p1 + self.prep_k(KEEP)), self.w2p_loads(q1, q2), 0)
        f2s = S(); self.stamp(f2s, "f2a"); f2s.WV("hst"); self.flag_set(f2s, sF2O, False); self.stamp(f2s, "f2b")
        if c.f2gap < 0: s += f2s
        s.WL0(); s.I("s_barrier")
        self.stamp(s, "prep")
        s += self.last_conv(self.w2p_loads(q2, 70 - c.nlate), [(c.f2gap, grp(f2s), 1)] if c.f2gap >= 0 else [], cap=c.ccap, start=max(2, c.f2gap + 2))
        self.stamp(s, "convm")
        s.I("L_join:")
        return s

    def spare_path(self):
        s = S()
        s.I("L_spare:")
        PS = (PR, 192, 200); KP = (208, 240, 224); UA = 136
        adk, cm, adc, adg, ad2 = self.addresses(90, "s")
        for i in range(192, 208, 2): s.I(f"v_mov_b64 {v(i,2)}, 0")
        s.I(f"v_add_u32 v152, 512, {v(self.pa)}\nv_add_u32 v153, 4, {v(self.pb)}\nv_add_u32 v154, 1024, {v(self.pa)}\nv_add_u32 v155, 8, {v(self.pb)}")
        pl = S()
        for r in (1, 2): self.param_loads(pl, PS[r], 150 + 2*r, 151 + 2*r, f"par{r}")
        s += adk
        chs = [self.kgen_chains(PS[r], f"par{r}") for r in range(3)]
        nh = [i for i, it in enumerate(chs[0]) if it.kind == "group"][0]
        ul = S()
        for rr in range(3): self.u_loads(ul, a(UA+8*rr, 4), a(UA+4+8*rr, 4), f"u{rr}", 32*rr)
        for r in range(3):
            rest = chs[r][nh:]
            if r == 0:
                k_ = self.c.sfx
                rest = S(chs[0][:k_] + self.p1tail(True) + sprinkle(chs[0][k_:], pl, 4))
            if r == 2:
                g = S(); self.flag_check(g, FALL, "f1s"); g.I("s_barrier"); self.stamp(g, "s_f1")
                g.I(f"s_cmp_lg_u32 s2, 255\ns_cbranch_scc1 L_noagg")
                self.flag_set(g, "0", True)
                g.I("L_noagg:")
                k_ = self.c.sf1
                rest = S(rest[:k_] + g + sprinkle(rest[k_:], S(ul[:3] + self.w2p_loads(0, self.c.spre)), 0))
            s += rest
            if r == 0: self.rst_zero(s)
            s.WL0(); s.I("s_barrier")
            self.stamp(s, f"s_kg1_{r}")
            if r < 2:
                hd = chs[r+1][:nh]; f1_, f2_, f3_ = hd[:30], hd[30:60], hd[60:]
                if r == 0: f1_ = S(cm + adc); f2_ = S(ad2); f3_ = hd
            else:
                f1_ = self.prep_k(KP[0]); f2_ = self.prep_u(lambda i, n: a(UA+i, n), "u0"); f3_ = S()
            FR = [a(4*i, 4) for i in range(24)]
            kr, uid = self.kgen_reads(FR)
            s += kr[:14]; s += f1_; s += kr[14:]
            s += self.kgen_mfma(PS[r], FR, uid, (), f2_)
            if r == 0: s.WV("p1st")
            s.I("s_barrier")
            self.stamp(s, f"s_kg2_{r}")
            if r == 0: self.flag_set(s, "s28", True)
            p0, p1 = self.kgen_post(KP[r], KP[r] + 8)
            s += p0
            if r == 1: self.flag_issue(s, FALL, "f1s")
            s += f3_
            if r < 2: s += p1
        def bar(tag=None):
            b = S()
            if tag: b.WL(tag)
            else: b.WL0()
            b.I("s_barrier"); return S(S().SKIP(3) + grp(b))
        def f3(k):
            g = S(); g.I(f"s_lshl_b32 {sT0}, {sPAIR}, 7\ns_add_u32 {sT0}, {sT0}, {WS_F3 + 128*k}")
            self.flag_set(g, sT0, True); return grp(g)
        def prep(r, pads): return S(self.prep_k(KP[r], r % 2) + self.prep_u(lambda i, n: a(UA+8*r+i, n), f"u{r}", r % 2, pads))
        def st(n):
            g = S(); self.stamp(g, n); return g
        if 'nop' in self.c.exp: prep = lambda r, pads: S().DS(f"ds_write_b32 {v(PADK)}, {v(ZERO)} offset:{DK_[r%2]}", "cp")
        def weave(fin, pr):
            o = S(); pr = list(pr)
            for it in fin:
                if it.kind == "skip":
                    o += pr[:5]; del pr[:5]
                else:
                    if is_valu(it) and pr: o.append(pr.pop(0))
                    o.append(it)
            return S(o + pr)
        ctl = [S(p1 + prep(1, True) + bar("cp")),
               S(st("s_conv_0") + bar("cpart0_7") + weave(self.conv_fin(24, 24, 48, 0), prep(2, False)) + bar("cp")),
               S(st("s_conv_1") + S().WV("sst") + bar("cpart1_7") + f3(0) + self.conv_fin(24, 24, 48, 1) + bar("cf1"))]
        if 'nold' in self.c.exp:
            s += ul[3:]; s.WV0(); self.stamp(s, "s_c")
            cv = self.last_conv(S(self.w2p_loads(54, 70)), [], 3, self.c.scap, ctl, 300)
        else:
            cv = self.last_conv(S(ul[3:] + self.w2p_loads(self.c.spre, 70 - self.c.nlate)), [], 3, self.c.scap, ctl, 4, self.c.scvend)
        fl = flat(cv)
        ix = lambda tag, kind: [i for i, it in enumerate(fl) if it.tag == tag and it.kind == kind]
        assert max(ix("cp", "ds")) < min(ix("w2p_24", "vm"))
        s += cv
        self.stamp(s, "s_conv_2")
        s.I("s_barrier")
        s += f3(1)
        s.I(f"s_add_u32 {sPAIR}, {sPAIR}, 2")
        s.I("s_branch L_join\nL_spend:")
        return s

    def gemm2(self):
        c = self.c
        s = S()
        UT = 48; B2 = 24; PT = 136; GV = 168; AC = 192
        NUP = c.nh0
        hl = self.h_loads()
        def bar(tag=None):
            b = S()
            if tag: b.WL(tag)
            else: b.WL0()
            b.I("s_barrier"); return S(S().SKIP(3) + grp(b))
        assert c.nlate <= 10
        jobs = [(5 * k, max(5 * (k - self.NH) + 6, 8), hl[k]) for k in range(NUP, 56)]
        cur = S()
        for it in self.w2p_loads(70 - c.nlate, 70):
            cur.append(it)
            if it.kind == "vm": jobs.append((int(it.tag[4:]) - 0.5, 0, cur)); cur = S()
        xl = self.xb_loads()
        jobs.append((c.b2dl, 0, S(xl[4:])))
        for i in range(4): jobs.append((c.xdl + 12 * i, 0, S(xl[i:i+1])))
        jobs.sort(key=lambda j: j[0])
        ld = S(); lst = []; pos = 1.0
        for dl, rel, it in jobs:
            pos = max(pos, rel)
            assert pos < dl - 8, (pos, dl)
            for x in it: ld.append(x); lst.append(int(pos) - (0 if any(y.kind == "vm" for y in flat([x])) else 1))
            pos += c.g2pace
        sides = []
        g = S(bar() + self.conv_fin(136, 152, 168))
        self.stamp(g, "sst")
        g.G(S().I(f"s_lshl_b32 {sT1}, {sPAIR}, 7\ns_add_u32 {sT1}, {sT1}, {WS_F3}"))
        g.I(f"s_mul_i32 {sMK}, {sW}, {PBW}\ns_mov_b32 m0, {sMK}")
        g.G(S().I(f"s_cmp_lt_u32 {sW}, 2\ns_cselect_b32 {sT2}, {8*32768}, 0"))
        g.I(f"s_mov_b32 {sT3}, {4*32768}\nv_mov_b32 v52, {hx(f2u(-LOG2E))}\nv_mov_b32 v53, 1.0")
        sides.append((0, g, 0))
        b2u = S().WV("b2")
        for i in range(4):
            b2u.I(f"v_lshlrev_b32 {v(B2+2*i)}, 16, {v(UT+i)}\nv_and_b32 {v(B2+2*i+1)}, 0xffff0000, {v(UT+i)}")
        def pwrite(mb):
            A = AC + 20 * (mb % 2); w = S()
            for nb in range(5):
                for r in range(4):
                    w.DS(f"ds_write_addtid_b32 {v(A+4*nb+r)} offset:{L_PB+(mb%2)*PBS+nb*PBN+r*256}", "pw")
            return w
        def gcalc(mb, pk=False):
            e = S(); pb = (mb % 2) * PBS
            G_ = GV + 8*mb if mb < 3 else PT
            for src in range(4):
                for h in range(2):
                    e.DS(f"ds_read_b128 {v(PT+8*src+4*h,4)}, {v(PRD)} offset:{pb+src*PBW+16*h}", f"pp{src}")
            def op2(name, d, x, y):
                if pk:
                    for i in range(0, 8, 2): e.I(f"v_pk_{name}_f32 {v(d+i,2)}, {v(x+i,2)}, {v(y+i,2)}")
                else:
                    for i in range(8): e.I(f"v_{name}_f32 {v(d+i)}, {v(x+i)}, {v(y+i)}")
            e.SKIP(2)
            e.WL("pp0"); op2("add", PT, PT, B2)
            e.WL("pp1"); op2("add", PT, PT, PT+8)
            e.WL("pp3"); op2("add", PT+16, PT+16, PT+24)
            op2("add", PT, PT, PT+16)
            if pk:
                for i in range(0, 8, 2): e.I(f"v_pk_mul_f32 {v(PT+8+i,2)}, {v(PT+i,2)}, v[52:53] op_sel_hi:[1,0]")
            else:
                for i in range(8): e.I(f"v_mul_f32 {v(PT+8+i)}, v52, {v(PT+i)}")
            for i in range(8): e.I(f"v_exp_f32 {v(PT+8+i)}, {v(PT+8+i)}")
            if pk:
                for i in range(0, 8, 2): e.I(f"v_pk_add_f32 {v(PT+8+i,2)}, {v(PT+8+i,2)}, v[52:53] op_sel:[0,1] op_sel_hi:[1,1]")
            else:
                for i in range(8): e.I(f"v_add_f32 {v(PT+8+i)}, 1.0, {v(PT+8+i)}")
            for i in range(8): e.I(f"v_rcp_f32 {v(PT+8+i)}, {v(PT+8+i)}")
            op2("mul", G_, PT, PT+8)
            return e
        SL = (40, 44, 48)
        g = S(); self.flag_issue(g, F3A, "f3"); sides.append((c.sgap - 35, g, 1))
        g = S(); self.stamp(g, "pre3"); self.flag_check(g, F3A, "f3"); self.stamp(g, "poll3")
        for i, so in enumerate(("0", sT3, sT2)):
            g.VM(f"buffer_load_dwordx4 {v(SL[i],4)}, {v(SLD)}, {RWS}, {so} offen sc1", "sl")
        sides.append((c.sgap, g, 1))
        ep = []
        for mb in range(3):
            f3 = S()
            if mb == 0: self.flag_set(f3, sT1, True); self.stamp(f3, "f3s")
            ep.append(S(pwrite(mb) + (S(b2u + S().WV("sst")) if mb == 0 else S()) + bar("pw") + f3 + gcalc(mb)))
        mf = []
        for mb in range(4):
            A = AC + 20 * (mb % 2)
            for st in range(14):
                k = mb * 14 + st
                for nb in range(5):
                    g = S()
                    if nb == 0: g.WV(f"h_{k}")
                    if mb == 0 and st*5+nb >= 70 - c.nlate: g.WV(f"w2p_{st*5+nb}")
                    cin = "0" if st == 0 else v(A+4*nb, 4)
                    g.I(f"v_mfma_f32_16x16x32_bf16 {v(A+4*nb,4)}, {v(self.hreg(k),4)}, {self.w2reg(st*5+nb)}, {cin}")
                    if st == 13 and nb == 4 and mb < 3: self.stamp(g, f"g2_{mb}")
                    mf.append(Item("group", tag=list(g)))
        carry = S()
        for mb in range(4):
            lo, hi = 70 * mb, 70 * (mb + 1)
            sel = [i for i, p_ in enumerate(lst) if lo <= max(p_, 0) < hi]
            sd = [(lst[sel[0]] - lo, S(ld[i] for i in sel), [lst[i] - lo for i in sel])] if sel else []
            sd += [(a_ - lo, b_, p_) for a_, b_, p_ in sides if lo <= a_ < hi]
            if mb >= 1: sd.append((3, S(carry + ep[mb-1]), 0))
            body, rests = fill(mf[lo:hi], sd, c.g2cap0 if mb == 0 else c.g2cap)
            s += body
            if sel: s += rests[0]; rests = rests[1:]
            rest = S(sum(rests, []))
            carry = rest
            assert not any(it.kind == "ds" and "addtid" in it.text for it in flat(rest))
            assert mb > 0 or not rest
            if c.verbose: print('block', mb, 'carry', len(rest))
        self.stamp(s, "g2e")
        SV = 64; XU = 80; SU = 112
        s.WV("x3"); s.WV("sl")
        for i in range(3): s.DS(f"ds_write_b128 {v(SWR)}, {v(SL[i],4)} offset:{i*4*1040}", "sw")
        s += pwrite(3)
        self.stamp(s, "t0")
        def xun(mb):
            for i in range(4):
                s.I(f"v_lshlrev_b32 {v(XU+8*mb+2*i)}, 16, {v(XRf(mb)+i)}\nv_and_b32 {v(XU+8*mb+1+2*i)}, 0xffff0000, {v(XRf(mb)+i)}")
        s += carry
        xun(0)
        self.stamp(s, "t1")
        s += bar()
        self.stamp(s, "t2")
        for i in range(8):
            s.DS(f"ds_read_b64 {v(SV+2*i,2)}, {v(SRD_)} offset:{i*128}", "sv")
        gc = gcalc(3, True)
        s += gc[:8]
        for mb in range(1, 4): xun(mb)
        s.WL("sv")
        def final(mb):
            G_ = GV + 8*mb if mb < 3 else PT
            for i in range(8):
                src = v(SV + 2*i + mb//2)
                s.I(f"v_and_b32 {v(SU+i)}, 0xffff0000, {src}" if mb % 2 else f"v_lshlrev_b32 {v(SU+i)}, 16, {src}")
            for i in range(0, 8, 2): s.I(f"v_pk_fma_f32 {v(XU+8*mb+i,2)}, {v(G_+i,2)}, {v(SU+i,2)}, {v(XU+8*mb+i,2)}")
            for i in range(4): s.I(f"v_cvt_pk_bf16_f32 {v(XRf(mb)+i)}, {v(XU+8*mb+2*i)}, {v(XU+8*mb+2*i+1)}")
            s.I(f"s_mov_b32 {sT0}, {mb*16*1280}")
            s.VM(f"buffer_store_dwordx4 {v(XRf(mb),4)}, {v(XO)}, {ROUT}, {sT0} offen", "ost")
        for mb in range(3): final(mb)
        self.stamp(s, "t3")
        s += gc[8:]
        final(3)
        self.stamp(s, "t4")
        if c.stamps:
            s.WV0()
            self.stamp(s, "end")
            s.I(f"s_memrealtime s[38:39]\ns_waitcnt lgkmcnt(0)\nv_writelane_b32 v3, s38, 62\nv_writelane_b32 v3, s98, 63")
            s.I(f"s_lshl_b32 {sT0}, s2, 10\ns_add_u32 {sT0}, {sT0}, {WS_STAMP}\nv_lshlrev_b32 v40, 2, v0")
            s.VM(f"buffer_store_dword v3, v40, {RWS}, {sT0} offen")
        if c.probe:
            s.WV0()
            if c.probe == "fixed": s.I("s_mov_b32 s97, 0")
            if c.probe == "endp": s.I("s_memrealtime s[38:39]\ns_waitcnt lgkmcnt(0)\ns_sub_u32 s97, s38, s98")
            if c.probe == "cyc": s.I("s_memtime s[38:39]\ns_waitcnt lgkmcnt(0)\ns_sub_u32 s97, s38, s100\ns_lshr_b32 s97, s97, 4")
            s.I(f"""s_cmp_ge_u32 {sSLOT}, 28
            s_cselect_b32 s97, {'s97' if c.probe in ('endp','cyc') or c.probe.startswith('s_') else '0'}, {'0' if c.probe.startswith('s_') else 's97'}
            s_add_u32 s97, s97, 6000
            L_probe:
            s_sleep 1
            s_memrealtime s[38:39]
            s_waitcnt lgkmcnt(0)
            s_sub_u32 s38, s38, s98
            s_cmp_lt_u32 s38, s97
            s_cbranch_scc1 L_probe""")
        s.I("L_end:")
        return s

HEADER = open("cdna_kernels/" + NAME + ".s.ref").read().split("; Override launch geometry")[0]
def emit(cfg, path):
    G_ = Gen(cfg)
    lines = G_.build()
    if cfg.stamps: lines = ["; STAMPS " + ",".join(G_.stamps)] + lines
    body = "\n".join(l if l.endswith(":") else "    " + l for l in lines)
    txt = HEADER + f"""; @launch grid=(256,1,1) block=(256,1,1) lds={LDS_BYTES}
.amdgcn_target "amdgcn-amd-amdhsa--gfx950"
.text
.globl {NAME}_kernel
.p2align 8
.type {NAME}_kernel,@function
{NAME}_kernel:
{body}
    s_endpgm
.section .rodata,"a"
.p2align 6
.amdhsa_kernel {NAME}_kernel
  .amdhsa_next_free_vgpr 512
  .amdhsa_next_free_sgpr 102
  .amdhsa_accum_offset 256
  .amdhsa_group_segment_fixed_size 0
  .amdhsa_kernarg_size 136
  .amdhsa_user_sgpr_count 2
  .amdhsa_user_sgpr_kernarg_segment_ptr 1
  .amdhsa_system_sgpr_workgroup_id_x 1
.end_amdhsa_kernel
"""
    open(path, "w").write(txt)
    return len(lines), G_.total

if __name__ == "__main__":
    c = Cfg()
    out = "cdna_kernels/" + NAME + ".s"
    for arg in sys.argv[1:]:
        k, val = arg.split("=")
        if k == "out": out = val if val.startswith("/") else "dev/" + val
        else: setattr(c, k, eval(val))
    print(emit(c, out), "->", out)
```
